```python
import torch

def _softmax(x, axis=-1):
    return torch.softmax(x, dim=axis)
def _gelu(x):
    return torch.nn.functional.gelu(x, approximate="tanh")
def _silu(x):
    return torch.nn.functional.silu(x)
def _sigmoid(x):
    return torch.sigmoid(x)
def _layernorm(x, axis=-1, eps=1e-5):
    m = x.mean(dim=axis, keepdim=True)
    v = x.var(dim=axis, keepdim=True, unbiased=False)
    return (x - m) / torch.sqrt(v + eps)
def _scatter_add(tgt, idx, src, axis=0):
    return tgt.clone().index_add_(axis, idx, src)
def _segment_sum(src, seg, n):
    out = torch.zeros((n,) + src.shape[1:], dtype=src.dtype)
    return out.index_add_(0, seg, src)
def _pad(x, pw):
    flat = tuple(v for pair in reversed(pw) for v in pair)
    return torch.nn.functional.pad(x, flat)

kernel_name = 'concat_heads__sliding_block__grouped_kv_mqa__prompt'

def setup_inputs():

    _w = (lambda a: (lambda t: t.to(torch.bfloat16) if t.is_floating_point() else t)(torch.as_tensor(a)))
    def _A_setup():
        B, S, D = 1, 2048, 1024
        return {
            "x": _w((lambda *s: torch.randn(*s, dtype=torch.bfloat16) * 0.2)(B, S, D)),
            "wqkv": _w((lambda *s: torch.randn(*s, dtype=torch.bfloat16) * 0.2)(D, 3 * D)),
            "wo": _w((lambda *s: torch.randn(*s, dtype=torch.bfloat16) * 0.05)(D, D)),
        }
    _A_in = _A_setup()

    def _B_setup():
        B, S, D, H = 1, 2048, 1024, 32
        Dh = D // H
        return {
            "x": _w((lambda *s: torch.randn(*s, dtype=torch.bfloat16) * 0.05)(B, S, D)),
            "wq": _w((lambda *s: torch.randn(*s, dtype=torch.bfloat16) * 0.8)(D, H * Dh)),
            "wk": _w((lambda *s: torch.randn(*s, dtype=torch.bfloat16) * 0.8)(D, Dh)),
            "wv": _w((lambda *s: torch.randn(*s, dtype=torch.bfloat16) * 0.2)(D, Dh)),
            "wo": _w((lambda *s: torch.randn(*s, dtype=torch.bfloat16) * 0.2)(H * Dh, D)),
        }
    _B_in = _B_setup()

    return {
        "A_x": _A_in["x"],
        "A_wqkv": _A_in["wqkv"],
        "A_wo": _A_in["wo"],
        "B_x": _B_in["x"],
        "B_wq": _B_in["wq"],
        "B_wk": _B_in["wk"],
        "B_wv": _B_in["wv"],
        "B_wo": _B_in["wo"],
    }

def reference(A_x, A_wqkv, A_wo, B_x, B_wq, B_wk, B_wv, B_wo):
    def _A_ref(x, wqkv, wo):
        B, S, D = x.shape
        H = 32; Dh = D // H; W = 256
        qkv = (lambda x, *d: x.permute(*d))((x @ wqkv).reshape(B, S, 3, H, Dh), 2, 0, 3, 1, 4)
        q, k, v = qkv[0], qkv[1], qkv[2]
        scores = torch.einsum("bhqd,bhkd->bhqk", q, k) * (Dh ** -0.5)
        idx = torch.arange(S)
        mask = (idx[:, None] - idx[None, :] >= 0) & (idx[:, None] - idx[None, :] < W)
        scores = torch.where(mask[None, None], scores, -1e9)
        p = _softmax(scores, axis=-1)
        o = torch.einsum("bhqk,bhkd->bhqd", p, v)
        return (lambda x, *d: x.permute(*d))(o, 0, 2, 1, 3).reshape(B, S, D) @ wo

    def _B_ref(x, wq, wk, wv, wo):
        B, S, D = x.shape
        H = 32
        Dh = D // H
        q = (lambda x, *d: x.permute(*d))((x @ wq).reshape(B, S, H, Dh), 0, 2, 1, 3)
        k = x @ wk
        v = x @ wv
        scores = torch.einsum("bhqd,bkd->bhqk", q, k) * (Dh ** -0.5)
        p = _softmax(scores, axis=-1)
        o = torch.einsum("bhqk,bkd->bhqd", p, v)
        return (lambda x, *d: x.permute(*d))(o, 0, 2, 1, 3).reshape(B, S, H * Dh) @ wo

    a = _A_ref(A_x, A_wqkv, A_wo)
    b = _B_ref(B_x, B_wq, B_wk, B_wv, B_wo)
    return torch.concatenate([a, b], axis=-1)
```

```python
import re, subprocess, sys

class Asm:
    def __init__(self):
        self.lines = []
        self.uid = 0
    def __call__(self, text):
        for l in text.split("\n"):
            l = l.rstrip()
            if l.strip():
                self.lines.append(l if l.strip().endswith(":") and not l.startswith(" ") else "  " + l.strip())
    def label(self, name):
        self.lines.append(name + ":")
    def newlabel(self, p="L"):
        self.uid += 1
        return f"{p}_{self.uid}"
    def text(self):
        return "\n".join(self.lines) + "\n"

def vr(base, n=1):
    return f"v{base}" if n == 1 else f"v[{base}:{base+n-1}]"
def sr(base, n=1):
    return f"s{base}" if n == 1 else f"s[{base}:{base+n-1}]"

def interleave(primary, secondary, positions=None):
    out = []; k = 0; ns = len(secondary); np_ = len(primary)
    for i, x in enumerate(primary):
        while k < ns and i >= k * np_ / ns:
            out.append(secondary[k]); k += 1
        out.append(x)
    out += secondary[k:]
    return out

REG = re.compile(r"^(-?\|?)([vsa])(\d+)\|?$|^(-?\|?)([vsa])\[(\d+):(\d+)\]\|?$")
def regs_of(tok):
    tok = tok.strip()
    if tok in ("vcc", "vcc_lo", "vcc_hi"): return {("s", "vcc")}
    if tok == "exec": return {("s", "exec")}
    if tok == "m0": return {("s", "m0")}
    m = REG.match(tok)
    if not m: return set()
    if m.group(2): return {(m.group(2), int(m.group(3)))}
    return {(m.group(5), i) for i in range(int(m.group(6)), int(m.group(7)) + 1)}

TRANS = ("v_exp_", "v_log_", "v_rcp_", "v_rsq_", "v_sqrt_", "v_sin_", "v_cos_")
class Ins:
    pass
def parse(line):
    l = line.split(";")[0].split("//")[0].strip()
    if not l or l.startswith("."): return None
    if l.endswith(":"):
        i = Ins(); i.kind = "label"; i.name = l[:-1]; i.text = l; return i
    parts = l.split(None, 1)
    op = parts[0]; rest = parts[1] if len(parts) > 1 else ""
    toks = [t.strip() for t in rest.split(",")] if rest else []
    mods = ""
    if toks:
        sp = toks[-1].split()
        if sp:
            toks[-1] = sp[0]; mods = " ".join(sp[1:])
    i = Ins(); i.op = op; i.text = l; i.toks = toks; i.mods = mods
    i.w = set(); i.r = set(); i.states = 1
    i.kind = "other"
    R = [regs_of(t) for t in toks]
    if op == "s_nop":
        i.kind = "nop"; i.states = int(toks[0], 0) + 1
    elif op.startswith("v_mfma"):
        i.kind = "mfma"; i.w = R[0]; i.a = R[1]; i.b = R[2]; i.c = R[3]; i.r = R[1] | R[2] | R[3]
        i.passes = 8 if "32x32x16" in op else 4 if "16x16x32" in op else None
        assert i.passes
    elif op.startswith("v_cmp"):
        i.kind = "valu"; i.w = R[0]; i.r = set().union(*R[1:]) if len(R) > 1 else set()
        if op.startswith("v_cmpx"): i.w = i.w | {("s", "exec")}
    elif op.startswith("v_readfirstlane") or op.startswith("v_readlane"):
        i.kind = "valu"; i.sub = "readlane"; i.w = R[0]; i.r = set().union(*R[1:])
    elif op.startswith("v_permlane"):
        i.kind = "valu"; i.sub = "permlane"; i.w = R[0] | R[1]; i.r = R[0] | R[1]
    elif op.startswith("v_"):
        i.kind = "valu"; i.w = set(R[0]); i.r = set().union(*R[1:]) if len(R) > 1 else set()
        if op.startswith("v_cndmask") and len(toks) == 3: i.r |= {("s", "vcc")}
        if op.startswith("v_cndmask_b32_e32"): i.r |= {("s", "vcc")}
        if "_co_" in op:
            i.w |= R[1];
        if op.startswith(("v_fmac", "v_mac", "v_pk_fmac", "v_dot2c")): i.r |= R[0]
        if "dpp" in op or "row_" in mods or "quad_perm" in mods: i.sub = "dpp"
    elif op.startswith("ds_"):
        i.kind = "ds"
        if op.startswith(("ds_read", "ds_bpermute", "ds_permute", "ds_swizzle")):
            i.w = R[0]; i.r = set().union(*R[1:]) if len(R) > 1 else set()
        else:
            i.r = set().union(*R)
    elif op.startswith(("buffer_", "global_", "flat_")):
        i.kind = "vmem"
        i.lds = " lds" in (" " + mods) or "load_lds" in op
        if "load" in op and not i.lds:
            i.w = R[0]; i.r = set().union(*R[1:])
        elif "atomic" in op:
            i.r = set().union(*R)
            if "sc0" in mods: i.w = R[0]
        else:
            i.r = set().union(*R)
            if "store" in op:
                i.store_data = R[0] if op.startswith("buffer_") else R[1]
                i.wide = "x4" in op or "x3" in op
    elif op.startswith("s_"):
        i.kind = "salu"
        if op.startswith(("s_cmp", "s_bitcmp")): i.r = set().union(*R)
        elif op.startswith(("s_cbranch", "s_branch")): i.kind = "branch"; i.target = toks[0]
        elif op in ("s_endpgm",): i.kind = "end"
        elif op.startswith(("s_waitcnt", "s_barrier", "s_setprio", "s_sleep")): pass
        else:
            i.w = R[0] if R else set(); i.r = set().union(*R[1:]) if len(R) > 1 else set()
            if "saveexec" in op: i.w = i.w | {("s", "exec")}
    if not hasattr(i, "sub"): i.sub = ""
    return i

def isv(rs): return {x for x in rs if x[0] in "va"}
def iss(rs): return {x for x in rs if x[0] == "s"}

def need(p, c):
    n = 0
    if p.kind == "valu":
        pv = isv(p.w); ps = iss(p.w)
        if c.kind == "mfma" and pv & c.r: n = max(n, 2)
        if c.kind == "mfma" and ("s", "exec") in ps: n = max(n, 4)
        if c.kind == "valu":
            if p.op.startswith(TRANS) and not c.op.startswith(TRANS) and pv & c.r: n = max(n, 1)
            if c.sub == "readlane" and pv & c.r: n = max(n, 1)
            if c.sub == "readlane" and ps & c.r: n = max(n, 4)
            if c.sub == "readlane" and ("s", "exec") in ps: n = max(n, 4)
            if c.sub == "permlane" and pv & c.r: n = max(n, 2)
            if c.sub == "permlane" and ("s", "exec") in ps: n = max(n, 4)
            if c.sub == "dpp" and pv & c.r: n = max(n, 2)
            if c.sub == "dpp" and ("s", "exec") in ps: n = max(n, 5)
            if (ps - {("s", "exec")}) & c.r: n = max(n, 2)
            if "sdwa" in p.op or "op_sel" in p.mods:
                if pv & (c.r | c.w): n = max(n, 1)
        if c.kind == "vmem" and ps & c.r: n = max(n, 5)
    if p.kind == "salu" and ("s", "m0") in p.w:
        if c.kind == "vmem" and getattr(c, "lds", False): n = max(n, 1)
        if c.kind == "ds" and "addtid" in c.op: n = max(n, 1)
    if p.kind == "vmem" and hasattr(p, "store_data") and p.wide:
        if c.kind == "valu" and p.store_data & c.w: n = max(n, 2)
        elif c.kind in ("ds", "vmem") and p.store_data & c.w: n = max(n, 1)
    if p.kind == "mfma":
        P = p.passes
        t_full = {4: 8, 8: 12}[P]; t_part = {4: 6, 8: 10}[P]; t_war = {4: 3, 8: 7}[P]
        if c.kind == "mfma":
            if p.w & (c.a | c.b): n = max(n, t_full)
            if p.w & c.c:
                if not (p.w == c.c and p.passes == c.passes): n = max(n, t_part)
            elif p.w & c.w and not (p.w == c.w):
                n = max(n, t_part)
            elif p.w & c.w:
                if p.passes != c.passes: n = max(n, t_part)
        elif c.kind == "valu":
            if p.w & (c.r | c.w): n = max(n, t_full)
            if p.c & c.w: n = max(n, t_war)
        elif c.kind in ("ds", "vmem"):
            if p.w & (c.r | c.w): n = max(n, t_full)
    return n

def check(text, verbose=True):
    ins = [x for x in (parse(l) for l in text.split("\n")) if x is not None]
    labels = {x.name: k for k, x in enumerate(ins) if x.kind == "label"}
    problems = []
    W = 21
    def scan(k0, path):
        pass
    preds = {k: [] for k in range(len(ins))}
    for k, x in enumerate(ins):
        if k + 1 < len(ins):
            if not (x.kind == "end" or (x.kind == "branch" and x.op == "s_branch") or getattr(x, "op", "").startswith(("s_setpc", "s_swappc"))):
                preds[k + 1].append(k)
        if x.kind == "branch" and x.target in labels:
            preds[labels[x.target]].append(k)
    for k, c in enumerate(ins):
        if c.kind in ("label", "nop", "branch", "end"): continue
        stack = [(p, 0) for p in preds[k]]
        seen = {}
        while stack:
            j, dist = stack.pop()
            if j in seen and seen[j] <= dist: continue
            seen[j] = dist
            p = ins[j]
            if p.kind == "label":
                stack += [(q, dist) for q in preds[j]]; continue
            if p.kind not in ("nop", "branch"):
                n = need(p, c)
                if n > dist:
                    problems.append(f"need {n} have {dist}: [{p.text}] -> [{c.text}]")
            d2 = dist + p.states
            if d2 < W: stack += [(q, d2) for q in preds[j]]
    if verbose:
        for p in problems[:40]: print("HAZARD", p)
    return problems

def descriptor(name, vgpr, accum, sgpr=102):
    return f""".p2align 6
.amdhsa_kernel {name}
  .amdhsa_next_free_vgpr {vgpr}
  .amdhsa_next_free_sgpr {sgpr}
  .amdhsa_accum_offset {accum}
  .amdhsa_group_segment_fixed_size 0
  .amdhsa_kernarg_size 88
  .amdhsa_user_sgpr_count 2
  .amdhsa_user_sgpr_kernarg_segment_ptr 1
  .amdhsa_system_sgpr_workgroup_id_x 1
.end_amdhsa_kernel
"""
def khead(name):
    return f""".globl {name}
.p2align 8
.type {name},@function
{name}:
"""
```

```python
import struct
MB = 1 << 20
WS_QA  = 0
WS_KVA = 4 * MB
WS_QB  = 12 * MB
WS_KVB = 16 * MB
WS_OA  = 20 * MB
WS_OB  = 24 * MB
WS_SIZE = 32 * MB
def f32bits(x): return struct.unpack("<I", struct.pack("<f", x))[0]
QSCALE = f32bits((32 ** -0.5) * 1.4426950408889634)
KA_AX, KA_AWQKV, KA_AWO, KA_BX, KA_BWQ, KA_BWK, KA_BWV, KA_BWO, KA_OUT, KA_DBG, KA_WS = [8 * i for i in range(11)]
def srd_tail(a, base, size):
    a(f"s_mov_b32 s{base+2}, {hex(size)}")
    a(f"s_mov_b32 s{base+3}, 0x20000")
```

```python
from asmlib import *
from common import *

STG = 53248
XO, WO, KVO = 0, 16384, 49152
NAME = "p1_kernel"

def gen_p1(cfg):
    rot = cfg.get("p1_rot", 1)
    st_mod = cfg.get("p1_store", "")
    a = Asm()
    a(khead(NAME))
    a(f"""
    s_cmp_ge_u32 s2, 256
    s_cbranch_scc1 p1_exit
    v_lshrrev_b32 v1, 6, v0
    v_and_b32 v0, 63, v0
    s_and_b32 s7, s2, 7
    v_readfirstlane_b32 s3, v1
    s_lshr_b32 s4, s7, 1
    s_and_b32 s7, s7, 1
    s_lshl_b32 s7, s7, 3
    s_lshr_b32 s6, s2, 3
    s_and_b32 s5, s6, 7
    s_add_u32 s5, s5, s7
    s_lshr_b32 s6, s6, 3
    s_load_dwordx2 s[20:21], s[0:1], {KA_WS}
    s_cmp_eq_u32 s4, 3
    s_cbranch_scc1 p1_isB
    s_load_dwordx2 s[8:9], s[0:1], {KA_AX}
    s_load_dwordx2 s[12:13], s[0:1], {KA_AWQKV}
    s_load_dwordx2 s[16:17], s[0:1], {KA_AWQKV}
    s_mov_b32 s14, {hex(6*MB)}
    s_mov_b32 s18, 0
    s_branch p1_ptrs
p1_isB:
    s_load_dwordx2 s[8:9], s[0:1], {KA_BX}
    s_load_dwordx2 s[12:13], s[0:1], {KA_BWQ}
    s_mov_b32 s14, {hex(2*MB)}
    s_mov_b32 s18, 0x10000
    s_bitcmp1_b32 s6, 0
    s_cbranch_scc1 p1_isBV
    s_load_dwordx2 s[16:17], s[0:1], {KA_BWK}
    s_branch p1_ptrs
p1_isBV:
    s_load_dwordx2 s[16:17], s[0:1], {KA_BWV}
p1_ptrs:
    s_mov_b32 s10, {hex(4*MB)}
    s_mov_b32 s11, 0x20000
    s_mov_b32 s15, 0x20000
    s_mov_b32 s19, 0x20000
    s_mov_b32 s22, {hex(WS_SIZE)}
    s_mov_b32 s23, 0x20000
    s_cmp_ge_u32 s3, 4
    s_cbranch_scc1 p1_loader
    """)
    ACC = 0
    XF = 128
    WF = 144
    KF = 176
    KACC = 184
    XA = 200
    WA = 204
    KA = 208
    LN = 209
    T0 = 210
    xf = lambda st, mi: XF + 8 * st + 4 * mi
    wf = lambda st, tt: WF + 16 * st + 4 * tt
    kf = lambda st: KF + 4 * st
    acc = lambda mi, tt: ACC + 16 * (4 * mi + tt)
    a(f"""
    s_lshr_b32 s24, s3, 1
    s_and_b32 s25, s3, 1
    v_mov_b32 v{T0}, v0
    v_and_b32 v{T0+1}, 31, v{T0}            ; l&31
    v_lshrrev_b32 v{T0+2}, 5, v{T0}         ; hi
    v_lshrrev_b32 v{T0+3}, 1, v{T0}
    v_and_b32 v{T0+3}, 7, v{T0+3}           ; z
    v_xor_b32 v{T0+3}, v{T0+3}, v{T0+2}     ; hi^z
    v_lshlrev_b32 v{T0+3}, 4, v{T0+3}
    v_lshl_add_u32 v{T0+3}, v{T0+1}, 7, v{T0+3}   ; tok*128 + ..
    s_lshl_b32 s7, s24, 13                   ; wm*64*128
    v_add_u32 v{XA}, s7, v{T0+3}
    v_xor_b32 v{XA+1}, 32, v{XA}
    v_xor_b32 v{XA+2}, 64, v{XA}
    v_xor_b32 v{XA+3}, 0x60, v{XA}
    v_lshrrev_b32 v{T0+3}, 2, v{T0}
    v_and_b32 v{T0+3}, 3, v{T0+3}           ; r
    v_and_b32 v{T0+4}, 3, v{T0}             ; c4
    v_lshrrev_b32 v{T0+5}, 4, v{T0}
    v_and_b32 v{T0+5}, 1, v{T0+5}           ; g&1
    v_lshlrev_b32 v{T0+5}, 5, v{T0+5}
    v_lshl_add_u32 v{T0+5}, v{T0+4}, 3, v{T0+5}   ; (g&1)*32 + c4*8
    v_lshl_add_u32 v{T0+6}, v{T0+2}, 3, v{T0+3}   ; 8hi + r
    v_lshl_add_u32 v{KA}, v{T0+6}, 6, v{T0+5}
    v_add_u32 v{KA}, {KVO}, v{KA}
    v_lshl_add_u32 v{T0+5}, v{T0+6}, 9, v{T0+5}   ; (8hi+r)*512 + ...
    s_lshl_b32 s7, s25, 8
    s_add_u32 s7, s7, {WO}
    v_add_u32 v{T0+5}, s7, v{T0+5}
    """)
    for tt in range(4):
        a(f"v_xor_b32 v{T0+4}, {tt}, v{T0+3}")
        a(f"v_lshl_add_u32 v{WA+tt}, v{T0+4}, 6, v{T0+5}")
    a(f"v_lshlrev_b32 v{LN}, 4, v{T0}")
    for i in range(128): a(f"v_mov_b32 v{ACC+i}, 0")
    for i in range(16): a(f"v_mov_b32 v{KACC+i}, 0")
    a(f"s_mov_b32 s26, 0\ns_mov_b32 s50, {-2*STG}\ns_mov_b32 s51, {STG}")
    a(f"""
    s_cmp_eq_u32 s4, 2
    s_cbranch_scc1 p1_c_V
    s_cmp_eq_u32 s4, 3
    s_cbranch_scc0 p1_c_QK
    s_lshl_b32 s7, s6, 1
    s_add_u32 s7, s7, s25
    """)
    for v in range(8):
        a(f"s_cmp_eq_u32 s7, {v}")
        a(f"s_cbranch_scc1 p1_c_B{v}")
    a("s_endpgm")

    def reads(st, s, useKV):
        x = lambda mi: f"ds_read_b128 {vr(xf(st,mi),4)}, v{XA+s} offset:{4096*mi}"
        w = lambda tt, h: f"ds_read_b64_tr_b16 {vr(wf(st,tt)+2*h,2)}, v{WA+tt} offset:{8192*s+2048*h}"
        g = [[x(0), w(0,0), w(0,1)], [w(1,0), w(1,1)], [x(1), w(2,0)], [w(2,1), w(3,0), w(3,1)], []]
        if useKV:
            g[4] = [f"ds_read_b64_tr_b16 {vr(kf(st)+2*h,2)}, v{KA} offset:{1024*s+256*h}" for h in range(2)]
        return g

    def body(var, last):
        kv = var.get("kv")
        for s in range(4):
            st = s & 1
            mf = []
            for mi in range(2):
                for tt in range(4):
                    A_, B_ = (wf(st,tt), xf(st,mi))
                    if var["vtype"]: A_, B_ = B_, A_
                    mf.append(f"v_mfma_f32_32x32x16_bf16 {vr(acc(mi,tt),16)}, {vr(A_,4)}, {vr(B_,4)}, {vr(acc(mi,tt),16)}")
            if kv and (s >> 1) == kv[1]:
                A_, B_ = (kf(st), xf(st, kv[2]))
                if kv[0]: A_, B_ = B_, A_
                mf.insert(5, f"v_mfma_f32_32x32x16_bf16 {vr(KACC,16)}, {vr(A_,4)}, {vr(B_,4)}, {vr(KACC,16)}")
            gaps = [[] for _ in mf]
            ns = (s + 1) & 3
            nkv = kv and ((ns >> 1) == kv[1])
            a("s_waitcnt lgkmcnt(0)")
            if s == 3:
                if last:
                    pass
                else:
                    a("s_barrier")
                    g = reads(st ^ 1, 0, nkv)
                    add = lambda r: f"v_add_u32 v{r}, s27, v{r}"
                    gaps[0] = [add(XA), add(WA)] + g[0]
                    gaps[1] = [add(WA+1)] + g[1]
                    gaps[2] = [add(WA+2)] + g[2]
                    gaps[3] = [add(WA+3)] + g[3]
                    gaps[4] = ([add(KA)] + g[4]) if kv else []
                    if kv and not nkv: gaps[4] = [add(KA)]
                    gaps[5] = [add(XA+1), add(XA+2)]
                    gaps[6] = [add(XA+3), "s_sub_u32 s28, s28, 1", "s_cmp_lg_u32 s28, 0"]
            else:
                g = reads(st ^ 1, ns, nkv)
                for k in range(5): gaps[k] = list(g[k])
                if s == 0 and not last:
                    gaps[5] += ["s_add_u32 s26, s26, 1", "s_cmp_eq_u32 s26, 3"]
                    gaps[6] += ["s_cselect_b32 s27, s50, s51", "s_cselect_b32 s26, 0, s26"]
            for m, g in zip(mf, gaps):
                a(m)
                for x in g: a(x)

    def epilogue(var):
        kv = var.get("kv")
        a("s_nop 7")
        a("s_nop 3")
        if kv and kv[1] == 1:
            a(f"s_lshl_b32 s7, s24, 12")
            a(f"s_add_u32 s7, s7, {STG}")
            a(f"v_add_u32 v{T0}, s7, v{LN}")
            for j in range(4):
                a(f"ds_write_b128 v{T0}, {vr(KACC+4*j,4)} offset:{1024*j}")
        for mi in range(2):
            for tt in range(4):
                r = acc(mi, tt)
                if var["scale"]:
                    for j in range(8): a(f"v_pk_mul_f32 {vr(r+2*j,2)}, {vr(r+2*j,2)}, s[34:35]")
                for j in range(8): a(f"v_cvt_pk_bf16_f32 v{r+j}, v{r+2*j}, v{r+2*j+1}")
                a(f"s_mul_i32 s7, s31, {tt}")
                a(f"s_add_u32 s7, s7, s30")
                if mi: a(f"s_add_u32 s7, s7, s32")
                a(f"buffer_store_dwordx4 {vr(r,4)}, v{LN}, s[20:23], s7 offen{st_mod}")
                a(f"buffer_store_dwordx4 {vr(r+4,4)}, v{LN}, s[20:23], s7 offen offset:1024{st_mod}")
        if kv:
            a("s_waitcnt lgkmcnt(0)")
            a("s_barrier")
            if kv[1] == 0:
                a(f"s_lshl_b32 s7, s24, 12")
                a(f"s_add_u32 s7, s7, {STG}")
                a(f"v_add_u32 v{T0}, s7, v{LN}")
                for j in range(4):
                    a(f"ds_read_b128 {vr(XF+4*j,4)}, v{T0} offset:{1024*j}")
                a("s_waitcnt lgkmcnt(0)")
                for j in range(16): a(f"v_add_f32 v{KACC+j}, v{KACC+j}, v{XF+j}")
                for j in range(8): a(f"v_cvt_pk_bf16_f32 v{KACC+j}, v{KACC+2*j}, v{KACC+2*j+1}")
                a(f"""
                s_lshl_b32 s7, s5, 2
                s_lshl_b32 s33, s24, 1
                s_add_u32 s7, s7, s33
                s_add_u32 s7, s7, {kv[2]}
                s_lshl_b32 s7, s7, 12
                s_add_u32 s7, s7, {WS_KVB + 2048*kv[0]}
                buffer_store_dwordx4 {vr(KACC,4)}, v{LN}, s[20:23], s7 offen{st_mod}
                buffer_store_dwordx4 {vr(KACC+4,4)}, v{LN}, s[20:23], s7 offen offset:1024{st_mod}
                """)
        a("s_endpgm")

    def variant(lbl, var):
        a.label(lbl)
        a(f"""
        s_lshl_b32 s7, s6, 3
        s_lshl_b32 s33, s25, 2
        s_add_u32 s7, s7, s33          ; head0
        s_lshl_b32 s33, s5, 2
        s_lshl_b32 s36, s24, 1
        s_add_u32 s33, s33, s36        ; tb0
        """)
        if var["out"] in ("QA", "QB"):
            base = WS_QA if var["out"] == "QA" else WS_QB
            a(f"s_mov_b32 s31, 131072\ns_mov_b32 s32, 2048\ns_mov_b32 s36, {base}")
        else:
            a(f"s_mov_b32 s31, 262144\ns_mov_b32 s32, 4096\ns_mov_b32 s36, {WS_KVA + (2048 if var['out']=='VA' else 0)}")
        if var["out"] == "QKA":
            a(f"""
            s_cmp_eq_u32 s4, 0
            s_cselect_b32 s31, 131072, s31
            s_cselect_b32 s32, 2048, s32
            s_cselect_b32 s36, {WS_QA}, s36
            s_cselect_b32 s34, {hex(QSCALE)}, 1.0
            s_mov_b32 s35, s34
            """)
        else:
            a(f"s_mov_b32 s34, {hex(QSCALE)}\ns_mov_b32 s35, s34")
        a(f"""
        s_mul_i32 s7, s7, s31
        s_mul_i32 s33, s33, s32
        s_add_u32 s30, s7, s33
        s_add_u32 s30, s30, s36
        s_mov_b32 s28, 15
        s_waitcnt lgkmcnt(0)
        s_barrier
        """)
        kv = var.get("kv")
        for g in reads(0, 0, kv and kv[1] == 0):
            for x in g: a(x)
        lp = lbl + "_loop"
        a(".p2align 6")
        a.label(lp)
        body(var, False)
        a(f"s_cbranch_scc1 {lp}")
        body(var, True)
        epilogue(var)

    variant("p1_c_QK", dict(vtype=False, scale=True, out="QKA"))
    variant("p1_c_V", dict(vtype=True, scale=False, out="VA"))
    for v in range(8):
        nt, wn = v >> 1, v & 1
        variant(f"p1_c_B{v}", dict(vtype=False, scale=True, out="QB", kv=(nt & 1, wn, nt >> 1)))

    a.label("p1_loader")
    a(f"""
    s_sub_u32 s24, s3, 4
    s_and_b32 s25, s24, 1               ; parity
    v_lshrrev_b32 v4, 4, v0
    s_lshl_b32 s7, s25, 2
    v_add_u32 v4, s7, v4
    v_and_b32 v4, 7, v4                 ; swz
    v_and_b32 v5, 7, v0
    v_xor_b32 v4, v4, v5                ; chunk
    v_lshlrev_b32 v4, 4, v4
    v_lshrrev_b32 v5, 3, v0             ; tok_l
    v_lshl_add_u32 v1, v5, 11, v4
    s_lshl_b32 s7, s5, 7
    s_lshl_b32 s26, s24, 3
    s_add_u32 s7, s7, s26
    s_lshl_b32 s7, s7, 11
    v_add_u32 v1, s7, v1
    v_lshrrev_b32 v5, 5, v0             ; row_l
    s_lshl_b32 s7, s25, 1
    v_add_u32 v4, s7, v5
    v_and_b32 v4, 3, v4
    v_lshlrev_b32 v4, 2, v4
    v_and_b32 v6, 31, v0
    v_xor_b32 v4, v4, v6
    v_lshlrev_b32 v4, 4, v4             ; chunk*16
    s_lshl_b32 s26, s24, 1
    v_add_u32 v5, s26, v5
    v_lshlrev_b32 v3, 4, v0
    s_lshl_b32 s7, s24, 10
    v_add_u32 v3, s7, v3
    s_lshl_b32 s40, s24, 10             ; lw*1024
    """)
    if rot:
        a("s_lshl_b32 s41, s5, 1\ns_mul_i32 s7, s6, 5\ns_add_u32 s41, s41, s7\ns_and_b32 s41, s41, 15")
    else:
        a("s_mov_b32 s41, 0")
    a("s_cmp_eq_u32 s4, 3\ns_cbranch_scc1 p1_loadB")
    def loader(isB):
        RS = 2048 if isB else 6144
        G = 13 if isB else 12
        a(f"v_mul_u32_u24 v5, {RS}, v5" if RS != 2048 else "v_lshlrev_b32 v5, 11, v5")
        a("v_add_u32 v2, v4, v5")
        if isB:
            a("s_lshl_b32 s7, s6, 9")
        else:
            a("s_lshl_b32 s7, s4, 11\ns_lshl_b32 s26, s6, 9\ns_add_u32 s7, s7, s26")
        a("v_add_u32 v2, s7, v2")
        a("s_mov_b32 s42, s40")
        a("s_waitcnt lgkmcnt(0)")
        def issue():
            a(f"s_lshl_b32 s43, s41, 7")
            a(f"s_mul_i32 s44, s41, {64*RS}")
            if isB: a("s_lshl_b32 s46, s41, 12")
            seq = []
            for t in range(4): seq.append(("x", t))
            for t in range(8): seq.append(("w", t))
            order = [seq[0], seq[4], seq[5], seq[1], seq[6], seq[7], seq[2], seq[8], seq[9], seq[3], seq[10], seq[11]]
            for k, t in order:
                if k == "x":
                    a(f"s_add_u32 m0, s42, {XO + 4096*t}")
                    a(f"s_add_u32 s45, s43, {65536*t}")
                    a(f"buffer_load_dwordx4 v1, s[8:11], s45 offen lds")
                else:
                    a(f"s_add_u32 m0, s42, {WO + 4096*t}")
                    a(f"s_add_u32 s45, s44, {8*RS*t}")
                    a(f"buffer_load_dwordx4 v2, s[12:15], s45 offen lds")
            if isB:
                a(f"s_add_u32 m0, s42, {KVO}")
                a("s_nop 0")
                a(f"buffer_load_dwordx4 v3, s[16:19], s46 offen lds")
            a(f"""
            s_add_u32 s41, s41, 1
            s_and_b32 s41, s41, 15
            s_add_u32 s42, s42, {STG}
            s_cmp_ge_u32 s42, {3*STG}
            s_cselect_b32 s42, s40, s42
            """)
        issue(); issue()
        lp = a.newlabel("p1_ld")
        a("s_mov_b32 s47, 14")
        a.label(lp)
        a(f"s_waitcnt vmcnt({G})\ns_barrier")
        issue()
        a(f"s_sub_u32 s47, s47, 1\ns_cmp_lg_u32 s47, 0\ns_cbranch_scc1 {lp}")
        a(f"s_waitcnt vmcnt({G})\ns_barrier\ns_waitcnt vmcnt(0)\ns_barrier\ns_endpgm")
    loader(False)
    a.label("p1_loadB")
    loader(True)
    a.label("p1_exit")
    a("s_endpgm")
    return a.text(), descriptor(NAME, 256, 256), 3 * STG

if __name__ == "__main__":
    t, d, lds = gen_p1({})
    print(len(t.split("\n")), "lines; lds", lds)
    check(t)
```

```python
from asmlib import *
from common import *

NAME = "p2_kernel"
AREG = 0
RING = 65536
S = [0, 16]; P = [32, 40]; O = [48, 64]; L = [80, 84]
QB_ = [88, 96]
KB = [104, 120]
VB = [112, 128]
ONES = 136
MD = 140; M1 = 156
QA_ = [172, 180]
LN = 188
RB = 189
AB = 190
T0 = 192
NINF = "0xff800000"

def gen_p2(cfg):
    st_mod = cfg.get("p2_store", "")
    a = Asm()
    a(khead(NAME))
    a(f"""
    s_cmp_ge_u32 s2, 256
    s_cbranch_scc1 p2_exit
    s_load_dwordx2 s[8:9], s[0:1], {KA_WS}
    v_lshrrev_b32 v1, 6, v0
    v_and_b32 v0, 63, v0
    s_and_b32 s7, s2, 7
    v_readfirstlane_b32 s3, v1
    s_lshr_b32 s5, s2, 3
    s_and_b32 s4, s5, 3
    s_lshl_b32 s7, s7, 2
    s_add_u32 s4, s4, s7              ; h
    s_lshr_b32 s5, s5, 2              ; qb
    s_mov_b32 s10, {hex(WS_SIZE)}
    s_mov_b32 s11, 0x20000
    v_lshlrev_b32 v{LN}, 4, v0
    v_mov_b32 v{T0}, v0
    s_lshl_b32 s12, s5, 3
    s_lshl_b32 s7, s3, 1
    s_add_u32 s12, s12, s7
    s_lshl_b32 s13, s4, 17            ; h*131072
    s_lshl_b32 s7, s12, 11
    s_add_u32 s13, s13, s7
    s_add_u32 s14, s13, {WS_QB}
    s_lshl_b32 s15, s3, 12            ; w*4096
    s_add_u32 s16, s15, {WS_KVB + 2048}
    s_add_u32 s17, s15, {RING}
    s_mov_b32 s18, {WS_KVB}
    s_waitcnt lgkmcnt(0)
    """)
    for k in range(2):
        a(f"buffer_load_dwordx4 {vr(QB_[0]+4*k,4)}, v{LN}, s[8:11], s14 offen offset:{1024*k}")
    for k in range(2):
        a(f"buffer_load_dwordx4 {vr(QB_[1]+4*k,4)}, v{LN}, s[8:11], s14 offen offset:{2048+1024*k}")
    for k in range(2):
        a(f"buffer_load_dwordx4 {vr(KB[1]+4*k,4)}, v{LN}, s[8:11], s18 offen offset:{1024*k}")
    def chunk_dma():
        l = ["s_mov_b32 m0, s17", "s_add_u32 s17, s17, 16384"]
        for t in range(4):
            l.append(f"buffer_load_dwordx4 v{LN}, s[8:11], s16 offen offset:{1024*t} lds")
        l += ["s_add_u32 s16, s16, 16384", f"s_cmp_ge_u32 s17, {RING+49152}", f"s_cselect_b32 s19, 49152, 0", "s_sub_u32 s17, s17, s19"]
        return l
    for c in range(3):
        for x in chunk_dma(): a(x)
    a(f"""
    v_add_u32 v{RB}, {RING}, v{LN}
    s_lshl_b32 s7, s3, 13
    s_add_u32 s7, s7, {AREG}
    v_add_u32 v{AB}, s7, v{LN}
    v_and_b32 v{T0+1}, 15, v{T0}        ; m
    v_lshrrev_b32 v{T0+2}, 4, v{T0}
    v_and_b32 v{T0+2}, 1, v{T0+2}       ; (l>>4)&1
    v_lshlrev_b32 v{T0+2}, 2, v{T0+2}
    v_and_b32 v{T0+3}, 7, v{T0+1}
    v_cmp_eq_u32 vcc, v{T0+2}, v{T0+3}
    v_mov_b32 v{T0+4}, 0x3f803f80
    v_and_b32 v{T0+5}, 31, v{T0}        ; q
    v_cndmask_b32 v{ONES}, 0, v{T0+4}, vcc
    v_lshrrev_b32 v{T0+6}, 5, v{T0}
    v_lshlrev_b32 v{T0+6}, 2, v{T0+6}   ; 4*hi
    v_sub_u32 v{T0+5}, v{T0+5}, v{T0+6} ; q - 4hi
    v_mov_b32 v{ONES+1}, v{ONES}
    v_mov_b32 v{ONES+2}, v{ONES}
    v_mov_b32 v{ONES+3}, v{ONES}
    v_mov_b32 v{T0+4}, {NINF}
    """)
    for r in range(16):
        c = 8 * (r >> 2) + (r & 3)
        a(f"v_cmp_le_i32 vcc, {c}, v{T0+5}")
        a("s_nop 1")
        a(f"v_cndmask_b32 v{MD+r}, v{T0+4}, 0, vcc")
        a(f"v_cndmask_b32 v{M1+r}, 0, v{T0+4}, vcc")
    def zero_acc():
        for sl in range(2):
            for r in range(16): a(f"v_mov_b32 v{O[sl]+r}, 0")
            for r in range(4): a(f"v_mov_b32 v{L[sl]+r}, 0")
    zero_acc()

    def mf_S(slot, Q, K, C):
        return [f"v_mfma_f32_32x32x16_bf16 {vr(S[slot],16)}, {vr(K,4)}, {vr(Q,4)}, {C}",
                f"v_mfma_f32_32x32x16_bf16 {vr(S[slot],16)}, {vr(K+4,4)}, {vr(Q+4,4)}, {vr(S[slot],16)}"]
    def mf_PV(slot, V):
        return [f"v_mfma_f32_32x32x16_bf16 {vr(O[slot],16)}, {vr(V,4)}, {vr(P[slot],4)}, {vr(O[slot],16)}",
                f"v_mfma_f32_16x16x32_bf16 {vr(L[slot],4)}, {vr(ONES,4)}, {vr(P[slot],4)}, {vr(L[slot],4)}",
                f"v_mfma_f32_32x32x16_bf16 {vr(O[slot],16)}, {vr(V+4,4)}, {vr(P[slot]+4,4)}, {vr(O[slot],16)}",
                f"v_mfma_f32_16x16x32_bf16 {vr(L[slot],4)}, {vr(ONES,4)}, {vr(P[slot]+4,4)}, {vr(L[slot],4)}"]
    def softmax(slot):
        s_, p_ = S[slot], P[slot]
        v = []
        for i in range(8):
            v.append(f"v_exp_f32 v{s_+2*i}, v{s_+2*i}")
            v.append(f"v_exp_f32 v{s_+2*i+1}, v{s_+2*i+1}")
            if i > 0: v.append(f"v_cvt_pk_bf16_f32 v{p_+i-1}, v{s_+2*i-2}, v{s_+2*i-1}")
        v.append("s_nop 0") if False else None
        v.append(f"v_cvt_pk_bf16_f32 v{p_+7}, v{s_+14}, v{s_+15}")
        return v
    def phase(slot, smf, pvmf, extra=(), pre=()):
        for x in pre: a(x)
        v = softmax(slot)
        m = []
        if smf and pvmf: m = [smf[0], pvmf[0], pvmf[1], smf[1], pvmf[2], pvmf[3]]
        elif smf: m = [smf[0], smf[1]]
        elif pvmf: m = list(pvmf)
        nv = len(v)
        if len(m) == 6: pos = [0, 4, 8, 12, 16, 20]
        elif len(m) == 4: pos = [4, 8, 14, 18]
        elif len(m) == 2: pos = [0, 8]
        else: pos = []
        epos = [2 + (3 * i) for i in range(len(extra))]
        out = []
        for i in range(nv + 1):
            for k, p in enumerate(pos):
                if p == i: out.append(m[k])
            for k, p in enumerate(epos):
                if min(p, nv) == i: out.append(extra[k])
            if i < nv: out.append(v[i])
        for x in out: a(x)

    def rd_set(buf, addr, offK, offV):
        return [f"ds_read_b128 {vr(VB[buf],4)}, v{addr} offset:{offV}",
                f"ds_read_b128 {vr(KB[buf],4)}, v{addr} offset:{offK}",
                f"ds_read_b128 {vr(VB[buf]+4,4)}, v{addr} offset:{offV+1024}",
                f"ds_read_b128 {vr(KB[buf]+4,4)}, v{addr} offset:{offK+1024}"]

    a("s_waitcnt vmcnt(8)\ns_barrier")
    for x in rd_set(0, RB, 2048, 0): a(x)
    for x in mf_S(0, QB_[0], KB[1], "0"): a(x)
    a("s_nop 7\ns_nop 3")
    phase(0, mf_S(1, QB_[1], KB[1], "0"), [])
    a("s_mov_b32 s20, 0\ns_mov_b32 s21, 13\ns_mov_b32 s37, -32768\ns_mov_b32 s38, 16384")
    def a_loads():
        l = []
        l.append(f"s_add_u32 s14, s13, {WS_QA}")
        for k in range(4):
            l.append(f"buffer_load_dwordx4 {vr(QA_[0]+4*k,4)}, v{LN}, s[8:11], s14 offen offset:{1024*k}")
        l += ["s_lshl_b32 s7, s5, 3", "s_lshl_b32 s19, s3, 2", "s_add_u32 s7, s7, s19", "s_sub_u32 s7, s7, 8", "s_max_i32 s7, s7, 0",
              "s_lshl_b32 s7, s7, 12", "s_lshl_b32 s19, s4, 18", "s_add_u32 s7, s7, s19", f"s_add_u32 s7, s7, {WS_KVA}",
              "s_lshl_b32 s19, s3, 14"]
        for t in range(4):
            l.append(f"s_add_u32 m0, s19, {AREG + 4096*t}")
            l.append(f"s_add_u32 s14, s7, {4096*t}")
            for k in range(4):
                l.append(f"buffer_load_dwordx4 v{LN}, s[8:11], s14 offen offset:{1024*k} lds")
        return l
    def bbody(kind):
        for jj in range(4):
            buf = jj & 1
            pre = ["s_waitcnt lgkmcnt(0)"]
            extra = []
            lastt = kind == "c15" and jj == 3
            if jj == 3:
                n = {"loop": 4, "c13": 4, "c14": 20, "c15": 0}[kind]
                pre += [f"s_waitcnt vmcnt({n})", "s_barrier"]
                if kind != "c15":
                    pre += ["s_add_u32 s20, s20, 1", "s_cmp_eq_u32 s20, 3", "s_cselect_b32 s22, s37, s38", "s_cselect_b32 s20, 0, s20",
                            f"v_add_u32 v{RB}, s22, v{RB}"]
                    extra = rd_set(buf ^ 1, RB, 2048, 0)
                else:
                    extra = rd_set(0, AB, 8 * 4096, 9 * 4096 + 2048)
                    extra += [f"ds_read_b128 {vr(KB[1],4)}, v{AB} offset:{9*4096}", f"ds_read_b128 {vr(KB[1]+4,4)}, v{AB} offset:{9*4096+1024}"]
            else:
                extra = rd_set(buf ^ 1, RB, (jj + 1) * 4096 + 2048, (jj + 1) * 4096)
            phase(1, [] if lastt else mf_S(0, QB_[0], KB[buf], "0"), mf_PV(0, VB[buf]), extra=extra, pre=pre)
            if lastt: break
            extra = []
            if jj == 3:
                if kind == "loop": extra = chunk_dma()
                elif kind == "c13": extra = a_loads()
                if kind == "loop": extra = extra + ["s_sub_u32 s21, s21, 1", "s_cmp_lg_u32 s21, 0"]
            if len(extra) > 8:
                if kind == "c13":
                    pre2 = extra; extra = []
                else:
                    pre2 = []
                    merged = []; cur = []
                    for x in extra:
                        cur.append(x)
                        if x.startswith("buffer_") or x is extra[-1]:
                            merged.append("\n".join(cur)); cur = []
                    extra = merged
            else:
                pre2 = []
            phase(0, mf_S(1, QB_[1], KB[buf], "0"), mf_PV(1, VB[buf]), extra=extra, pre=pre2)
    a(".p2align 6")
    a.label("p2_bloop")
    bbody("loop")
    a("s_cbranch_scc1 p2_bloop")
    bbody("c13"); bbody("c14"); bbody("c15")
    a("s_nop 1")
    for x in mf_PV(1, VB[1]): a(x)

    def finish(part):
        slow = f"p2_slow{part}"; back = f"p2_back{part}"
        a("s_nop 7\ns_nop 7")
        for k in (0, 1, 4, 5): a(f"v_mov_b32 v{T0+k}, 0")
        for sl in range(2):
            for j in range(8):
                a(f"v_pk_fma_f32 {vr(T0,2)}, {vr(O[sl]+2*j,2)}, {vr(T0+4,2)}, {vr(T0,2)}")
        a(f"v_add_f32 v{T0}, v{T0}, v{T0+1}")
        a(f"v_mov_b32 v{T0+2}, 0x21800000      ; 2^-60")
        a(f"v_mov_b32 v{T0+3}, 0x5d800000      ; 2^60")
        a(f"v_cmp_eq_f32 s[24:25], 0, v{T0}")
        for sl in range(2):
            a(f"v_cmp_gt_f32 s[26:27], v{L[sl]}, v{T0+2}")
            a(f"v_cmp_lt_f32 s[28:29], v{L[sl]}, v{T0+3}")
            a("s_and_b64 s[24:25], s[24:25], s[26:27]")
            a("s_and_b64 s[24:25], s[24:25], s[28:29]")
        if cfg.get("force_slow"):
            a("s_mov_b64 s[24:25], 0")
        a("s_cmp_eq_u64 s[24:25], -1")
        a(f"s_cbranch_scc0 {slow}")
        a.label(back)
        base = WS_OB if part == "B" else WS_OA
        a(f"""
        s_lshl_b32 s7, s12, 16
        s_lshl_b32 s19, s4, 11
        s_add_u32 s7, s7, s19
        s_add_u32 s7, s7, {base}
        v_rcp_f32 v{T0}, v{L[0]}
        v_rcp_f32 v{T0+2}, v{L[1]}
        s_nop 0
        v_mov_b32 v{T0+1}, v{T0}
        v_mov_b32 v{T0+3}, v{T0+2}
        """)
        for sl in range(2):
            o = O[sl]
            for j in range(8): a(f"v_pk_mul_f32 {vr(o+2*j,2)}, {vr(o+2*j,2)}, {vr(T0+2*sl,2)}")
            for j in range(8): a(f"v_cvt_pk_bf16_f32 v{o+j}, v{o+2*j}, v{o+2*j+1}")
            if sl: a("s_add_u32 s7, s7, 65536")
            a(f"buffer_store_dwordx4 {vr(o,4)}, v{LN}, s[8:11], s7 offen{st_mod}")
            a(f"buffer_store_dwordx4 {vr(o+4,4)}, v{LN}, s[8:11], s7 offen offset:1024{st_mod}")
    finish("B")

    a("s_nop 1")
    zero_acc()
    a(f"""
    s_lshl_b32 s30, s3, 1
    s_cmp_eq_u32 s5, 0
    s_cselect_b32 s30, s30, -1          ; exit j
    s_waitcnt lgkmcnt(0)
    """)
    items = [(1, 1, vr(MD,16)), (0, 0, vr(MD,16)), (1, 0, "0")]
    for j in range(1, 7): items += [(0, -j, "0"), (1, -j, "0")]
    items += [(0, -7, "0"), (1, -7, vr(M1,16)), (0, -8, vr(M1,16))]
    assert len(items) == 18
    offK = lambda j: (8 + j) * 4096
    offV = lambda j: (8 + j) * 4096 + 2048
    for x in mf_S(1, QA_[1], KB[1], items[0][2]): a(x)
    a("s_nop 7\ns_nop 3")
    for n in range(18):
        slot = items[n][0]
        setj = n >> 1
        buf = setj & 1
        pre = []; extra = []
        if n % 2 == 0:
            if n > 0: pre = ["s_waitcnt lgkmcnt(0)"]
            nj = setj + 1
            if nj <= 8: extra = rd_set(buf ^ 1, AB, offK(-nj), offV(-nj + 1))
            elif nj == 9: extra = [f"ds_read_b128 {vr(VB[buf^1]+4*k,4)}, v{AB} offset:{offV(-8)+1024*k}" for k in range(2)]
        smf = []
        if n + 1 < 18:
            nslot, nk, nC = items[n + 1]
            smf = mf_S(nslot, QA_[nslot], KB[buf], nC)
        pv = mf_PV(items[n - 1][0], VB[buf]) if n >= 1 else []
        phase(slot, smf, pv, extra=extra, pre=pre)
        if n in (2, 6, 10, 14):
            a(f"s_cmp_eq_u32 s30, {(n-2)//2}")
            a("s_cbranch_scc1 p2_drainB")
    a("s_waitcnt lgkmcnt(0)")
    for x in mf_PV(0, VB[1]): a(x)
    a("s_branch p2_adone")
    a.label("p2_drainB")
    a("s_waitcnt lgkmcnt(0)")
    for x in mf_PV(1, VB[1]): a(x)
    a.label("p2_adone")
    finish("A")
    a("s_endpgm")

    def slow(part):
        a.label(f"p2_slow{part}")
        Q = QB_ if part == "B" else QA_
        CB = MD if False else T0 + 16
        K_, V_ = 224, 232
        for sl in range(2):
            a(f"s_add_u32 s35, s12, {sl}")
            if part == "B":
                a(f"s_mov_b32 s32, 0\ns_mov_b32 s33, 63\ns_mov_b32 s34, {WS_KVB}")
            else:
                a(f"s_sub_u32 s32, s35, 8\ns_max_i32 s32, s32, 0\ns_mov_b32 s33, s35\ns_lshl_b32 s34, s4, 18\ns_add_u32 s34, s34, {WS_KVA}")
            a(f"""
            v_lshrrev_b32 v{T0+5}, 4, v{LN}        ; lane
            v_and_b32 v{T0+4}, 31, v{T0+5}
            v_lshrrev_b32 v{T0+5}, 5, v{T0+5}
            v_lshlrev_b32 v{T0+5}, 2, v{T0+5}
            v_sub_u32 v{T0+4}, v{T0+4}, v{T0+5}
            s_lshl_b32 s7, s35, 5
            v_add_u32 v{T0+4}, s7, v{T0+4}
            v_mov_b32 v{T0+6}, {NINF}
            v_mov_b32 v{T0+7}, {NINF}
            """)
            def cblock(val):
                if part == "B":
                    for r in range(16): a(f"v_mov_b32 v{CB+r}, {val}")
                else:
                    a("s_lshl_b32 s7, s36, 5")
                    a(f"v_subrev_u32 v{T0+5}, s7, v{T0+4}")
                    for r in range(16):
                        c = 8 * (r >> 2) + (r & 3)
                        a(f"v_subrev_u32 v{T0+9}, {c}, v{T0+5}")
                        a(f"v_cmp_gt_u32 vcc, 0x100, v{T0+9}")
                        a("s_nop 1")
                        a(f"v_cndmask_b32 v{CB+r}, v{T0+7}, {val}, vcc")
            def loadK(withV):
                a("s_lshl_b32 s7, s36, 12\ns_add_u32 s7, s7, s34")
                for k in range(2): a(f"buffer_load_dwordx4 {vr(K_+4*k,4)}, v{LN}, s[8:11], s7 offen offset:{1024*k}")
                if withV:
                    for k in range(2): a(f"buffer_load_dwordx4 {vr(V_+4*k,4)}, v{LN}, s[8:11], s7 offen offset:{2048+1024*k}")
            l1 = a.newlabel("p2_s1"); l2 = a.newlabel("p2_s2")
            a("s_mov_b32 s36, s32")
            a.label(l1)
            loadK(False)
            cblock("0")
            a("s_waitcnt vmcnt(0)\ns_nop 1")
            for x in mf_S(sl, Q[sl], K_, vr(CB, 16)): a(x)
            a("s_nop 7\ns_nop 7")
            for r in range(0, 16, 2): a(f"v_max3_f32 v{T0+6}, v{S[sl]+r}, v{S[sl]+r+1}, v{T0+6}")
            a(f"s_add_u32 s36, s36, 1\ns_cmp_le_u32 s36, s33\ns_cbranch_scc1 {l1}")
            a(f"""
            v_mov_b32 v{T0+8}, v{T0+6}
            s_nop 1
            v_permlane32_swap_b32 v{T0+6}, v{T0+8}
            s_nop 1
            v_max_f32 v{T0+6}, v{T0+6}, v{T0+8}
            v_sub_f32 v{T0+6}, 0, v{T0+6}          ; -max
            """)
            for r in range(16): a(f"v_mov_b32 v{O[sl]+r}, 0")
            for r in range(4): a(f"v_mov_b32 v{L[sl]+r}, 0")
            a("s_mov_b32 s36, s32")
            a.label(l2)
            loadK(True)
            cblock(f"v{T0+6}")
            a("s_waitcnt vmcnt(0)\ns_nop 1")
            for x in mf_S(sl, Q[sl], K_, vr(CB, 16)): a(x)
            a("s_nop 7\ns_nop 7")
            for x in softmax(sl): a(x)
            a("s_nop 1")
            for x in mf_PV(sl, V_): a(x)
            a(f"s_nop 7\ns_nop 7\ns_add_u32 s36, s36, 1\ns_cmp_le_u32 s36, s33\ns_cbranch_scc1 {l2}")
        a("s_nop 7\ns_nop 7")
        a(f"s_branch p2_back{part}")
    slow("B"); slow("A")
    a.label("p2_exit")
    a("s_endpgm")
    return a.text(), descriptor(NAME, 256, 256), RING + 49152

if __name__ == "__main__":
    t, d, lds = gen_p2({})
    print(len(t.split("\n")), "lines; lds", lds)
    check(t)
```

```python
from asmlib import *
from common import *

STG = 32768
NST = 4
OO, WO = 0, 16384
NAME = "concat_heads__sliding_block__grouped_kv_mqa__prompt_kernel"

def gen_p3(cfg, name=NAME):
    st_mod = cfg.get("p3_store", "")
    a = Asm()
    a(khead(name))
    a(f"""
    s_cmp_ge_u32 s2, 256
    s_cbranch_scc1 p3_exit
    v_lshrrev_b32 v1, 6, v0
    v_and_b32 v0, 63, v0
    s_and_b32 s7, s2, 7
    v_readfirstlane_b32 s3, v1
    s_lshr_b32 s4, s7, 2
    s_and_b32 s7, s7, 3
    s_lshl_b32 s7, s7, 2
    s_lshr_b32 s6, s2, 3
    s_and_b32 s5, s6, 3
    s_add_u32 s5, s5, s7
    s_lshr_b32 s6, s6, 2
    s_load_dwordx2 s[8:9], s[0:1], {KA_WS}
    s_load_dwordx2 s[20:21], s[0:1], {KA_OUT}
    s_cmp_eq_u32 s4, 1
    s_cbranch_scc1 p3_isB
    s_load_dwordx2 s[12:13], s[0:1], {KA_AWO}
    s_branch p3_ptrs
p3_isB:
    s_load_dwordx2 s[12:13], s[0:1], {KA_BWO}
p3_ptrs:
    s_mov_b32 s10, {hex(WS_SIZE)}
    s_mov_b32 s11, 0x20000
    s_mov_b32 s14, {hex(2*MB)}
    s_mov_b32 s15, 0x20000
    s_mov_b32 s22, {hex(8*MB)}
    s_mov_b32 s23, 0x20000
    s_cmp_ge_u32 s3, 4
    s_cbranch_scc1 p3_loader
    """)
    ACC = 0
    OF = 64
    WF = 80
    OA_ = 96; WA = 97
    T0 = 100
    of = lambda st, mi: OF + 8 * st + 4 * mi
    wf = lambda st, tt: WF + 8 * st + 4 * tt
    acc = lambda mi, tt: ACC + 16 * (2 * mi + tt)
    a(f"""
    s_lshr_b32 s24, s3, 1               ; wm
    s_and_b32 s25, s3, 1                ; wn
    v_mov_b32 v99, v0
    v_lshlrev_b32 v{OA_}, 4, v0
    s_lshl_b32 s7, s24, 13
    v_add_u32 v{OA_}, s7, v{OA_}
    v_lshrrev_b32 v{T0}, 5, v0          ; hi
    v_lshrrev_b32 v{T0+1}, 2, v0
    v_and_b32 v{T0+1}, 3, v{T0+1}       ; r
    v_and_b32 v{T0+2}, 3, v0            ; c4
    v_lshrrev_b32 v{T0+3}, 4, v0
    v_and_b32 v{T0+3}, 1, v{T0+3}
    v_lshlrev_b32 v{T0+3}, 5, v{T0+3}
    v_lshl_add_u32 v{T0+3}, v{T0+2}, 3, v{T0+3}    ; (g&1)*32 + c4*8
    v_lshl_add_u32 v{T0+4}, v{T0}, 2, v{T0+1}      ; 4hi + r
    v_lshl_add_u32 v{T0+3}, v{T0+4}, 8, v{T0+3}
    v_add_u32 v{T0+3}, {WO}, v{T0+3}
    s_lshl_b32 s7, s25, 1
    """)
    for tt in range(2):
        a(f"s_add_u32 s26, s7, {tt}")
        a(f"v_xor_b32 v{T0+4}, s26, v{T0+1}")
        a(f"v_lshl_add_u32 v{WA+tt}, v{T0+4}, 6, v{T0+3}")
    for i in range(64): a(f"v_mov_b32 v{ACC+i}, 0")
    a(f"s_mov_b32 s26, 0\ns_mov_b32 s28, 15\ns_mov_b32 s50, {-(NST-1)*STG}\ns_mov_b32 s51, {STG}")

    def reads(st, s):
        o = lambda mi: f"ds_read_b128 {vr(of(st,mi),4)}, v{OA_} offset:{4096*mi + 1024*s}"
        w = lambda tt, h: f"ds_read_b64_tr_b16 {vr(wf(st,tt)+2*h,2)}, v{WA+tt} offset:{4096*s+2048*h}"
        return [[o(0), w(0,0), w(0,1)], [w(1,0), w(1,1), o(1)], [], []]
    def body(last):
        for s in range(4):
            st = s & 1
            mf = []
            for mi in range(2):
                for tt in range(2):
                    mf.append(f"v_mfma_f32_32x32x16_bf16 {vr(acc(mi,tt),16)}, {vr(wf(st,tt),4)}, {vr(of(st,mi),4)}, {vr(acc(mi,tt),16)}")
            gaps = [[] for _ in mf]
            a("s_waitcnt lgkmcnt(0)")
            if s == 3:
                if not last:
                    a("s_barrier")
                    g = reads(st ^ 1, 0)
                    add = lambda r: f"v_add_u32 v{r}, s27, v{r}"
                    gaps[0] = [add(OA_), add(WA)] + g[0]
                    gaps[1] = [add(WA+1)] + g[1]
                    gaps[2] = ["s_sub_u32 s28, s28, 1", "s_cmp_lg_u32 s28, 0"]
            else:
                g = reads(st ^ 1, s + 1)
                gaps[0] = g[0]; gaps[1] = g[1]
                if s == 0 and not last:
                    gaps[2] = ["s_add_u32 s26, s26, 1", f"s_cmp_eq_u32 s26, {NST}"]
                    gaps[3] = ["s_cselect_b32 s27, s50, s51", "s_cselect_b32 s26, 0, s26"]
            for m, g in zip(mf, gaps):
                a(m)
                for x in g: a(x)
    a("s_waitcnt lgkmcnt(0)\ns_barrier")
    for g in reads(0, 0):
        for x in g: a(x)
    a(".p2align 6")
    a.label("p3_loop")
    body(False)
    a("s_cbranch_scc1 p3_loop")
    body(True)
    a(f"""
    s_nop 7
    s_nop 3
    v_and_b32 v{T0}, 31, v99              ; tok (l&31)
    v_lshrrev_b32 v{T0+1}, 5, v99         ; hi
    v_and_b32 v{T0+2}, 7, v99             ; tok&7
    v_lshlrev_b32 v{T0+3}, 7, v{T0}      ; tok*128
    v_lshl_add_u32 v{T0+3}, v{T0+1}, 3, v{T0+3}
    s_lshl_b32 s7, s3, 13
    v_add_u32 v{T0+3}, s7, v{T0+3}
    """)
    for u in range(8):
        a(f"v_xor_b32 v{T0+4}, {u}, v{T0+2}")
        a(f"v_lshl_add_u32 v{T0+8+u}, v{T0+4}, 4, v{T0+3}")
    for mi in range(2):
        for tt in range(2):
            r = acc(mi, tt)
            for j in range(8): a(f"v_cvt_pk_bf16_f32 v{r+j}, v{r+2*j}, v{r+2*j+1}")
            for q in range(4):
                a(f"ds_write_b64 v{T0+8+4*tt+q}, {vr(r+2*q,2)} offset:{4096*mi}")
    a(f"""
    v_lshrrev_b32 v{T0}, 3, v99           ; row
    v_and_b32 v{T0+1}, 7, v99
    v_xor_b32 v{T0+2}, v{T0}, v{T0+1}
    v_and_b32 v{T0+2}, 7, v{T0+2}
    v_lshlrev_b32 v{T0+2}, 4, v{T0+2}
    v_lshl_add_u32 v{T0+2}, v{T0}, 7, v{T0+2}
    s_lshl_b32 s7, s3, 13
    v_add_u32 v{T0+2}, s7, v{T0+2}
    v_lshlrev_b32 v{T0+3}, 12, v{T0}
    v_lshl_add_u32 v{T0+3}, v{T0+1}, 4, v{T0+3}
    s_lshl_b32 s7, s5, 7
    s_lshl_b32 s26, s24, 6
    s_add_u32 s7, s7, s26
    s_lshl_b32 s7, s7, 12                ; token0*4096
    s_lshl_b32 s26, s4, 11
    s_add_u32 s7, s7, s26
    s_lshl_b32 s26, s6, 8
    s_add_u32 s7, s7, s26
    s_lshl_b32 s26, s25, 7
    s_add_u32 s7, s7, s26
    s_waitcnt lgkmcnt(0)
    """)
    for j in range(8):
        a(f"ds_read_b128 {vr(4*j,4)}, v{T0+2} offset:{1024*j}")
    for j in range(8):
        a(f"s_waitcnt lgkmcnt({7-j})")
        a(f"buffer_store_dwordx4 {vr(4*j,4)}, v{T0+3}, s[20:23], s7 offen{st_mod}")
        if j < 7: a(f"s_add_u32 s7, s7, {8*4096}")
    a("s_endpgm")

    a.label("p3_loader")
    a(f"""
    s_sub_u32 s24, s3, 4                 ; lw
    v_lshlrev_b32 v1, 4, v0
    s_lshl_b32 s7, s5, 2
    s_add_u32 s7, s7, s24
    s_lshl_b32 s7, s7, 16                ; tb*65536
    s_cmp_eq_u32 s4, 1
    s_mov_b32 s26, {WS_OA}
    s_cselect_b32 s26, {WS_OB}, s26
    s_add_u32 s7, s7, s26
    v_add_u32 v1, s7, v1
    v_lshrrev_b32 v5, 4, v0              ; row_l
    v_lshlrev_b32 v4, 2, v5
    v_and_b32 v6, 15, v0
    v_xor_b32 v4, v4, v6
    v_lshlrev_b32 v4, 4, v4
    s_lshl_b32 s7, s24, 2
    v_add_u32 v5, s7, v5
    v_lshl_add_u32 v2, v5, 11, v4
    s_lshl_b32 s7, s6, 8
    v_add_u32 v2, s7, v2
    s_lshl_b32 s40, s24, 12
    s_lshl_b32 s39, s24, 10
    s_mov_b32 s42, 0
    """)
    if cfg.get("p3_rot", 0):
        a("s_lshl_b32 s41, s6, 1\ns_add_u32 s41, s41, s5\ns_and_b32 s41, s41, 15")
    else:
        a("s_mov_b32 s41, 0")
    a("s_waitcnt lgkmcnt(0)")
    def issue():
        a("s_lshl_b32 s43, s41, 12")
        a("s_lshl_b32 s44, s41, 17")
        a("s_add_u32 s46, s42, s39")
        for t in range(4):
            if t == 0:
                a(f"s_add_u32 m0, s42, s40")
                a("s_nop 0")
            if t == 0 or True:
                pass
            a(f"buffer_load_dwordx4 v1, s[8:11], s43 offen offset:{1024*t} lds")
        for t in range(4):
            a(f"s_add_u32 m0, s46, {WO + 4096*t}")
            a(f"s_add_u32 s45, s44, {16*2048*t}")
            a(f"buffer_load_dwordx4 v2, s[12:15], s45 offen lds")
        a(f"""
        s_add_u32 s41, s41, 1
        s_and_b32 s41, s41, 15
        s_add_u32 s42, s42, {STG}
        s_cmp_ge_u32 s42, {NST*STG}
        s_cselect_b32 s42, 0, s42
        """)
    G = 8
    for _ in range(NST - 1): issue()
    a(f"s_mov_b32 s47, {16-(NST-1)}")
    a.label("p3_ld")
    a(f"s_waitcnt vmcnt({G*(NST-2)})\ns_barrier")
    issue()
    a("s_sub_u32 s47, s47, 1\ns_cmp_lg_u32 s47, 0\ns_cbranch_scc1 p3_ld")
    for k in range(NST - 2, -1, -1):
        a(f"s_waitcnt vmcnt({G*k})\ns_barrier")
    a("s_endpgm")
    a.label("p3_exit")
    a("s_endpgm")
    return a.text(), descriptor(name, 128, 128), NST * STG

if __name__ == "__main__":
    t, d, lds = gen_p3({})
    print(len(t.split("\n")), "lines; lds", lds)
    check(t)
```

```python
import struct
MB = 1 << 20
WS_QA  = 0
WS_KVA = 4 * MB
WS_QB  = 12 * MB
WS_KVB = 16 * MB
WS_OA  = 20 * MB
WS_OB  = 24 * MB
WS_SIZE = 32 * MB
def f32bits(x): return struct.unpack("<I", struct.pack("<f", x))[0]
QSCALE = f32bits((32 ** -0.5) * 1.4426950408889634)
KA_AX, KA_AWQKV, KA_AWO, KA_BX, KA_BWQ, KA_BWK, KA_BWV, KA_BWO, KA_OUT, KA_DBG, KA_WS = [8 * i for i in range(11)]
def srd_tail(a, base, size):
    a(f"s_mov_b32 s{base+2}, {hex(size)}")
    a(f"s_mov_b32 s{base+3}, 0x20000")

WS_PROF = 28 * MB
class Prof:
    def __init__(self, a, on, kidx, srd):
        self.a, self.on, self.k, self.srd, self.n = a, on, kidx, srd, 0
    def stamp(self, real=False):
        if not self.on or real: return
        a = self.a
        r = 70 + 2 * self.n
        assert r + 1 < 100
        a("s_memtime s[66:67]\ns_memrealtime s[68:69]")
        a("s_waitcnt lgkmcnt(0)")
        a(f"s_mov_b32 s{r}, s66\ns_mov_b32 s{r+1}, s68")
        self.n += 1
    def at(self, n):
        self.n = n - 1
    def flush(self, vt, wave_sreg="s3", nwaves=8):
        if not self.on: return
        a = self.a
        a("s_waitcnt vmcnt(0)")
        self.stamp()
        a(f"s_lshl_b32 s68, s2, 3\ns_add_u32 s68, s68, {wave_sreg}\ns_lshl_b32 s68, s68, 7\ns_add_u32 s68, s68, {WS_PROF + self.k * 0x40000}")
        a(f"v_mov_b32 v{vt+1}, s68")
        for i in range(2 * self.n):
            a(f"v_mov_b32 v{vt}, s{70+i}")
            a(f"buffer_store_dword v{vt}, v{vt+1}, s[{self.srd}:{self.srd+3}], 0 offen offset:{4*i}")
        a("s_waitcnt vmcnt(0)")
```

```python
from asmlib import *
from common import *

STG = 53248
XO, WO, KVO = 0, 16384, 49152
NAME = "p1_kernel"

def gen_p1(cfg):
    rot = cfg.get("p1_rot", 1)
    st_mod = cfg.get("p1_store", "")
    a = Asm()
    pr = Prof(a, cfg.get("prof"), 0, 20)
    a(khead(NAME))
    pr.stamp(True); pr.stamp()
    a(f"""
    s_cmp_ge_u32 s2, 256
    s_cbranch_scc1 p1_exit
    v_lshrrev_b32 v1, 6, v0
    v_and_b32 v0, 63, v0
    s_and_b32 s7, s2, 7
    v_readfirstlane_b32 s3, v1
    s_lshr_b32 s4, s7, 1
    s_and_b32 s7, s7, 1
    s_lshl_b32 s7, s7, 3
    s_lshr_b32 s6, s2, 3
    s_and_b32 s5, s6, 7
    s_add_u32 s5, s5, s7
    s_lshr_b32 s6, s6, 3
    s_load_dwordx2 s[20:21], s[0:1], {KA_WS}
    s_cmp_eq_u32 s4, 3
    s_cbranch_scc1 p1_isB
    s_load_dwordx2 s[8:9], s[0:1], {KA_AX}
    s_load_dwordx2 s[12:13], s[0:1], {KA_AWQKV}
    s_load_dwordx2 s[16:17], s[0:1], {KA_AWQKV}
    s_mov_b32 s14, {hex(6*MB)}
    s_mov_b32 s18, 0
    s_branch p1_ptrs
p1_isB:
    s_load_dwordx2 s[8:9], s[0:1], {KA_BX}
    s_load_dwordx2 s[12:13], s[0:1], {KA_BWQ}
    s_mov_b32 s14, {hex(2*MB)}
    s_mov_b32 s18, 0x10000
    s_bitcmp1_b32 s6, 0
    s_cbranch_scc1 p1_isBV
    s_load_dwordx2 s[16:17], s[0:1], {KA_BWK}
    s_branch p1_ptrs
p1_isBV:
    s_load_dwordx2 s[16:17], s[0:1], {KA_BWV}
p1_ptrs:
    s_mov_b32 s10, {hex(4*MB)}
    s_mov_b32 s11, 0x20000
    s_mov_b32 s15, 0x20000
    s_mov_b32 s19, 0x20000
    s_mov_b32 s22, {hex(WS_SIZE)}
    s_mov_b32 s23, 0x20000
    s_cmp_ge_u32 s3, 4
    s_cbranch_scc1 p1_loader
    """)
    ACC = 0
    XF = 128
    WF = 144
    KF = 176
    KACC = 184
    XA = 200
    WA = 204
    KA = 208
    LN = 209
    T0 = 210
    xf = lambda st, mi: XF + 8 * st + 4 * mi
    wf = lambda st, tt: WF + 16 * st + 4 * tt
    kf = lambda st: KF + 4 * st
    acc = lambda mi, tt: ACC + 16 * (4 * mi + tt)
    a(f"""
    s_lshr_b32 s24, s3, 1
    s_and_b32 s25, s3, 1
    v_mov_b32 v{T0}, v0
    v_and_b32 v{T0+1}, 31, v{T0}            ; l&31
    v_lshrrev_b32 v{T0+2}, 5, v{T0}         ; hi
    v_lshrrev_b32 v{T0+3}, 1, v{T0}
    v_and_b32 v{T0+3}, 7, v{T0+3}           ; z
    v_xor_b32 v{T0+3}, v{T0+3}, v{T0+2}     ; hi^z
    v_lshlrev_b32 v{T0+3}, 4, v{T0+3}
    v_lshl_add_u32 v{T0+3}, v{T0+1}, 7, v{T0+3}   ; tok*128 + ..
    s_lshl_b32 s7, s24, 13                   ; wm*64*128
    v_add_u32 v{XA}, s7, v{T0+3}
    v_xor_b32 v{XA+1}, 32, v{XA}
    v_xor_b32 v{XA+2}, 64, v{XA}
    v_xor_b32 v{XA+3}, 0x60, v{XA}
    v_lshrrev_b32 v{T0+3}, 2, v{T0}
    v_and_b32 v{T0+3}, 3, v{T0+3}           ; r
    v_and_b32 v{T0+4}, 3, v{T0}             ; c4
    v_lshrrev_b32 v{T0+5}, 4, v{T0}
    v_and_b32 v{T0+5}, 1, v{T0+5}           ; g&1
    v_lshlrev_b32 v{T0+5}, 5, v{T0+5}
    v_lshl_add_u32 v{T0+5}, v{T0+4}, 3, v{T0+5}   ; (g&1)*32 + c4*8
    v_lshl_add_u32 v{T0+6}, v{T0+2}, 3, v{T0+3}   ; 8hi + r
    v_lshl_add_u32 v{KA}, v{T0+6}, 6, v{T0+5}
    v_add_u32 v{KA}, {KVO}, v{KA}
    v_lshl_add_u32 v{T0+5}, v{T0+6}, 9, v{T0+5}   ; (8hi+r)*512 + ...
    s_lshl_b32 s7, s25, 8
    s_add_u32 s7, s7, {WO}
    v_add_u32 v{T0+5}, s7, v{T0+5}
    """)
    for tt in range(4):
        a(f"v_xor_b32 v{T0+4}, {tt}, v{T0+3}")
        a(f"v_lshl_add_u32 v{WA+tt}, v{T0+4}, 6, v{T0+5}")
    a(f"v_lshlrev_b32 v{LN}, 4, v{T0}")
    for i in range(128): a(f"v_mov_b32 v{ACC+i}, 0")
    for i in range(16): a(f"v_mov_b32 v{KACC+i}, 0")
    a(f"s_mov_b32 s26, 0\ns_mov_b32 s50, {-2*STG}\ns_mov_b32 s51, {STG}")
    a(f"""
    s_cmp_eq_u32 s4, 2
    s_cbranch_scc1 p1_c_V
    s_cmp_eq_u32 s4, 3
    s_cbranch_scc0 p1_c_QK
    s_lshl_b32 s7, s6, 1
    s_add_u32 s7, s7, s25
    """)
    for v in range(8):
        a(f"s_cmp_eq_u32 s7, {v}")
        a(f"s_cbranch_scc1 p1_c_B{v}")
    a("s_endpgm")

    def reads(st, s, useKV):
        x = lambda mi: f"ds_read_b128 {vr(xf(st,mi),4)}, v{XA+s} offset:{4096*mi}"
        w = lambda tt, h: f"ds_read_b64_tr_b16 {vr(wf(st,tt)+2*h,2)}, v{WA+tt} offset:{8192*s+2048*h}"
        g = [[x(0), w(0,0), w(0,1)], [w(1,0), w(1,1)], [x(1), w(2,0)], [w(2,1), w(3,0), w(3,1)], []]
        if useKV:
            g[4] = [f"ds_read_b64_tr_b16 {vr(kf(st)+2*h,2)}, v{KA} offset:{1024*s+256*h}" for h in range(2)]
        return g

    def body(var, last):
        kv = var.get("kv")
        for s in range(4):
            st = s & 1
            mf = []
            for mi in range(2):
                for tt in range(4):
                    A_, B_ = (wf(st,tt), xf(st,mi))
                    if var["vtype"]: A_, B_ = B_, A_
                    mf.append(f"v_mfma_f32_32x32x16_bf16 {vr(acc(mi,tt),16)}, {vr(A_,4)}, {vr(B_,4)}, {vr(acc(mi,tt),16)}")
            if kv and (s >> 1) == kv[1]:
                A_, B_ = (kf(st), xf(st, kv[2]))
                if kv[0]: A_, B_ = B_, A_
                mf.insert(5, f"v_mfma_f32_32x32x16_bf16 {vr(KACC,16)}, {vr(A_,4)}, {vr(B_,4)}, {vr(KACC,16)}")
            gaps = [[] for _ in mf]
            ns = (s + 1) & 3
            nkv = kv and ((ns >> 1) == kv[1])
            a("s_waitcnt lgkmcnt(0)")
            if s == 3:
                if last:
                    pass
                else:
                    a("s_barrier")
                    g = reads(st ^ 1, 0, nkv)
                    add = lambda r: f"v_add_u32 v{r}, s27, v{r}"
                    gaps[0] = [add(XA), add(WA)] + g[0]
                    gaps[1] = [add(WA+1)] + g[1]
                    gaps[2] = [add(WA+2)] + g[2]
                    gaps[3] = [add(WA+3)] + g[3]
                    gaps[4] = ([add(KA)] + g[4]) if kv else []
                    if kv and not nkv: gaps[4] = [add(KA)]
                    gaps[5] = [add(XA+1), add(XA+2)]
                    gaps[6] = [add(XA+3), "s_sub_u32 s28, s28, 1", "s_cmp_lg_u32 s28, 0"]
            else:
                g = reads(st ^ 1, ns, nkv)
                for k in range(5): gaps[k] = list(g[k])
                if s == 0 and not last:
                    gaps[5] += ["s_add_u32 s26, s26, 1", "s_cmp_eq_u32 s26, 3"]
                    gaps[6] += ["s_cselect_b32 s27, s50, s51", "s_cselect_b32 s26, 0, s26"]
            for m, g in zip(mf, gaps):
                a(m)
                for x in g: a(x)

    def epilogue(var):
        kv = var.get("kv")
        a("s_nop 7")
        a("s_nop 3")
        if kv and kv[1] == 1:
            a(f"s_lshl_b32 s7, s24, 12")
            a(f"s_add_u32 s7, s7, {STG}")
            a(f"v_add_u32 v{T0}, s7, v{LN}")
            for j in range(4):
                a(f"ds_write_b128 v{T0}, {vr(KACC+4*j,4)} offset:{1024*j}")
        for mi in range(2):
            for tt in range(4):
                r = acc(mi, tt)
                if var["scale"]:
                    for j in range(8): a(f"v_pk_mul_f32 {vr(r+2*j,2)}, {vr(r+2*j,2)}, s[34:35]")
                for j in range(8): a(f"v_cvt_pk_bf16_f32 v{r+j}, v{r+2*j}, v{r+2*j+1}")
                a(f"s_mul_i32 s7, s31, {tt}")
                a(f"s_add_u32 s7, s7, s30")
                if mi: a(f"s_add_u32 s7, s7, s32")
                a(f"buffer_store_dwordx4 {vr(r,4)}, v{LN}, s[20:23], s7 offen{st_mod}")
                a(f"buffer_store_dwordx4 {vr(r+4,4)}, v{LN}, s[20:23], s7 offen offset:1024{st_mod}")
        if kv:
            a("s_waitcnt lgkmcnt(0)")
            a("s_barrier")
            if kv[1] == 0:
                a(f"s_lshl_b32 s7, s24, 12")
                a(f"s_add_u32 s7, s7, {STG}")
                a(f"v_add_u32 v{T0}, s7, v{LN}")
                for j in range(4):
                    a(f"ds_read_b128 {vr(XF+4*j,4)}, v{T0} offset:{1024*j}")
                a("s_waitcnt lgkmcnt(0)")
                for j in range(16): a(f"v_add_f32 v{KACC+j}, v{KACC+j}, v{XF+j}")
                for j in range(8): a(f"v_cvt_pk_bf16_f32 v{KACC+j}, v{KACC+2*j}, v{KACC+2*j+1}")
                a(f"""
                s_lshl_b32 s7, s5, 2
                s_lshl_b32 s33, s24, 1
                s_add_u32 s7, s7, s33
                s_add_u32 s7, s7, {kv[2]}
                s_lshl_b32 s7, s7, 12
                s_add_u32 s7, s7, {WS_KVB + 2048*kv[0]}
                buffer_store_dwordx4 {vr(KACC,4)}, v{LN}, s[20:23], s7 offen{st_mod}
                buffer_store_dwordx4 {vr(KACC+4,4)}, v{LN}, s[20:23], s7 offen offset:1024{st_mod}
                """)
        pr.flush(T0)
        a("s_endpgm")

    def variant(lbl, var):
        a.label(lbl)
        a(f"""
        s_lshl_b32 s7, s6, 3
        s_lshl_b32 s33, s25, 2
        s_add_u32 s7, s7, s33          ; head0
        s_lshl_b32 s33, s5, 2
        s_lshl_b32 s36, s24, 1
        s_add_u32 s33, s33, s36        ; tb0
        """)
        if var["out"] in ("QA", "QB"):
            base = WS_QA if var["out"] == "QA" else WS_QB
            a(f"s_mov_b32 s31, 131072\ns_mov_b32 s32, 2048\ns_mov_b32 s36, {base}")
        else:
            a(f"s_mov_b32 s31, 262144\ns_mov_b32 s32, 4096\ns_mov_b32 s36, {WS_KVA + (2048 if var['out']=='VA' else 0)}")
        if var["out"] == "QKA":
            a(f"""
            s_cmp_eq_u32 s4, 0
            s_cselect_b32 s31, 131072, s31
            s_cselect_b32 s32, 2048, s32
            s_cselect_b32 s36, {WS_QA}, s36
            s_cselect_b32 s34, {hex(QSCALE)}, 1.0
            s_mov_b32 s35, s34
            """)
        else:
            a(f"s_mov_b32 s34, {hex(QSCALE)}\ns_mov_b32 s35, s34")
        a(f"""
        s_mul_i32 s7, s7, s31
        s_mul_i32 s33, s33, s32
        s_add_u32 s30, s7, s33
        s_add_u32 s30, s30, s36
        s_mov_b32 s28, 15
        s_waitcnt lgkmcnt(0)
        s_barrier
        """)
        pr.at(2); pr.stamp()
        kv = var.get("kv")
        for g in reads(0, 0, kv and kv[1] == 0):
            for x in g: a(x)
        lp = lbl + "_loop"
        a(".p2align 6")
        a.label(lp)
        body(var, False)
        a(f"s_cbranch_scc1 {lp}")
        body(var, True)
        pr.stamp()
        epilogue(var)

    variant("p1_c_QK", dict(vtype=False, scale=True, out="QKA"))
    variant("p1_c_V", dict(vtype=True, scale=False, out="VA"))
    for v in range(8):
        nt, wn = v >> 1, v & 1
        variant(f"p1_c_B{v}", dict(vtype=False, scale=True, out="QB", kv=(nt & 1, wn, nt >> 1)))

    a.label("p1_loader")
    a(f"""
    s_sub_u32 s24, s3, 4
    s_and_b32 s25, s24, 1               ; parity
    v_lshrrev_b32 v4, 4, v0
    s_lshl_b32 s7, s25, 2
    v_add_u32 v4, s7, v4
    v_and_b32 v4, 7, v4                 ; swz
    v_and_b32 v5, 7, v0
    v_xor_b32 v4, v4, v5                ; chunk
    v_lshlrev_b32 v4, 4, v4
    v_lshrrev_b32 v5, 3, v0             ; tok_l
    v_lshl_add_u32 v1, v5, 11, v4
    s_lshl_b32 s7, s5, 7
    s_lshl_b32 s26, s24, 3
    s_add_u32 s7, s7, s26
    s_lshl_b32 s7, s7, 11
    v_add_u32 v1, s7, v1
    v_lshrrev_b32 v5, 5, v0             ; row_l
    s_lshl_b32 s7, s25, 1
    v_add_u32 v4, s7, v5
    v_and_b32 v4, 3, v4
    v_lshlrev_b32 v4, 2, v4
    v_and_b32 v6, 31, v0
    v_xor_b32 v4, v4, v6
    v_lshlrev_b32 v4, 4, v4             ; chunk*16
    s_lshl_b32 s26, s24, 1
    v_add_u32 v5, s26, v5
    v_lshlrev_b32 v3, 4, v0
    s_lshl_b32 s7, s24, 10
    v_add_u32 v3, s7, v3
    s_lshl_b32 s40, s24, 10             ; lw*1024
    """)
    if rot:
        a("s_lshl_b32 s41, s5, 1\ns_mul_i32 s7, s6, 5\ns_add_u32 s41, s41, s7\ns_and_b32 s41, s41, 15")
    else:
        a("s_mov_b32 s41, 0")
    a("s_cmp_eq_u32 s4, 3\ns_cbranch_scc1 p1_loadB")
    def loader(isB):
        RS = 2048 if isB else 6144
        G = 13 if isB else 12
        a(f"v_mul_u32_u24 v5, {RS}, v5" if RS != 2048 else "v_lshlrev_b32 v5, 11, v5")
        a("v_add_u32 v2, v4, v5")
        if isB:
            a("s_lshl_b32 s7, s6, 9")
        else:
            a("s_lshl_b32 s7, s4, 11\ns_lshl_b32 s26, s6, 9\ns_add_u32 s7, s7, s26")
        a("v_add_u32 v2, s7, v2")
        a("s_mov_b32 s42, s40")
        a("s_waitcnt lgkmcnt(0)")
        def issue():
            a(f"s_lshl_b32 s43, s41, 7")
            a(f"s_mul_i32 s44, s41, {64*RS}")
            if isB: a("s_lshl_b32 s46, s41, 12")
            seq = []
            for t in range(4): seq.append(("x", t))
            for t in range(8): seq.append(("w", t))
            order = [seq[0], seq[4], seq[5], seq[1], seq[6], seq[7], seq[2], seq[8], seq[9], seq[3], seq[10], seq[11]]
            for k, t in order:
                if k == "x":
                    a(f"s_add_u32 m0, s42, {XO + 4096*t}")
                    a(f"s_add_u32 s45, s43, {65536*t}")
                    a(f"buffer_load_dwordx4 v1, s[8:11], s45 offen lds")
                else:
                    a(f"s_add_u32 m0, s42, {WO + 4096*t}")
                    a(f"s_add_u32 s45, s44, {8*RS*t}")
                    a(f"buffer_load_dwordx4 v2, s[12:15], s45 offen lds")
            if isB:
                a(f"s_add_u32 m0, s42, {KVO}")
                a("s_nop 0")
                a(f"buffer_load_dwordx4 v3, s[16:19], s46 offen lds")
            a(f"""
            s_add_u32 s41, s41, 1
            s_and_b32 s41, s41, 15
            s_add_u32 s42, s42, {STG}
            s_cmp_ge_u32 s42, {3*STG}
            s_cselect_b32 s42, s40, s42
            """)
        issue(); issue()
        lp = a.newlabel("p1_ld")
        a("s_mov_b32 s47, 14")
        a.label(lp)
        a(f"s_waitcnt vmcnt({G})\ns_barrier")
        issue()
        a(f"s_sub_u32 s47, s47, 1\ns_cmp_lg_u32 s47, 0\ns_cbranch_scc1 {lp}")
        a(f"s_waitcnt vmcnt({G})\ns_barrier\ns_waitcnt vmcnt(0)\ns_barrier")
        pr.at(2); pr.stamp(); pr.stamp(); pr.flush(8)
        a("s_endpgm")
    loader(False)
    a.label("p1_loadB")
    loader(True)
    a.label("p1_exit")
    a("s_endpgm")
    return a.text(), descriptor(NAME, 256, 256), 3 * STG

if __name__ == "__main__":
    t, d, lds = gen_p1({})
    print(len(t.split("\n")), "lines; lds", lds)
    check(t)
```

```python
from asmlib import *
from common import *

NAME = "p2_kernel"
AREG = 0
RING = 65536
NSLOT = 4
S = [0, 16]; P = [32, 40]; O = [48, 64]; L = [80, 84]
QB_ = [88, 96]
KB = [104, 120]
VB = [112, 128]
ONES = 136
MD = 140; M1 = 156
QA_ = [172, 180]
LN = 188
RB = 189
AB = 190
T0 = 192
NINF = "0xff800000"

class VmTrack:
    def __init__(self): self.ops = []
    def issue(self, tag, n=1): self.ops += [tag] * n
    def need(self, tag):
        last = max(i for i, t in enumerate(self.ops) if t == tag)
        return len(self.ops) - 1 - last

def gen_p2(cfg):
    st_mod = cfg.get("p2_store", "")
    a = Asm()
    pr = Prof(a, cfg.get("prof"), 1, 8)
    a(khead(NAME))
    pr.stamp()
    a(f"""
    s_cmp_ge_u32 s2, 256
    s_cbranch_scc1 p2_exit
    s_load_dwordx2 s[8:9], s[0:1], {KA_WS}
    v_lshrrev_b32 v1, 6, v0
    v_and_b32 v0, 63, v0
    s_and_b32 s7, s2, 7
    v_readfirstlane_b32 s3, v1
    s_lshr_b32 s5, s2, 3
    s_and_b32 s4, s5, 3
    s_lshl_b32 s7, s7, 2
    s_add_u32 s4, s4, s7              ; h
    s_lshr_b32 s5, s5, 2              ; qb
    s_mov_b32 s10, {hex(WS_SIZE)}
    s_mov_b32 s11, 0x20000
    v_lshlrev_b32 v{LN}, 4, v0
    s_cmp_ge_u32 s3, 4
    s_cbranch_scc1 p2_loader
    v_mov_b32 v{T0}, v0
    s_lshl_b32 s12, s5, 3
    s_lshl_b32 s7, s3, 1
    s_add_u32 s12, s12, s7
    s_lshl_b32 s13, s4, 17            ; h*131072
    s_lshl_b32 s7, s12, 11
    s_add_u32 s13, s13, s7
    s_add_u32 s14, s13, {WS_QB}
    s_add_u32 s15, s13, {WS_QA}
    s_mov_b32 s18, {WS_KVB}
    s_waitcnt lgkmcnt(0)
    """)
    for k in range(2):
        a(f"buffer_load_dwordx4 {vr(QB_[0]+4*k,4)}, v{LN}, s[8:11], s14 offen offset:{1024*k}")
    for k in range(2):
        a(f"buffer_load_dwordx4 {vr(KB[1]+4*k,4)}, v{LN}, s[8:11], s18 offen offset:{1024*k}")
    for k in range(2):
        a(f"buffer_load_dwordx4 {vr(QB_[1]+4*k,4)}, v{LN}, s[8:11], s14 offen offset:{2048+1024*k}")
    for k in range(4):
        a(f"buffer_load_dwordx4 {vr(QA_[0]+4*k,4)}, v{LN}, s[8:11], s15 offen offset:{1024*k}")
    a(f"""
    v_add_u32 v{RB}, {RING}, v{LN}
    s_lshl_b32 s7, s3, 13
    s_add_u32 s7, s7, {AREG}
    v_add_u32 v{AB}, s7, v{LN}
    v_and_b32 v{T0+1}, 15, v{T0}        ; m
    v_lshrrev_b32 v{T0+2}, 4, v{T0}
    v_and_b32 v{T0+2}, 1, v{T0+2}       ; (l>>4)&1
    v_lshlrev_b32 v{T0+2}, 2, v{T0+2}
    v_and_b32 v{T0+3}, 7, v{T0+1}
    v_cmp_eq_u32 vcc, v{T0+2}, v{T0+3}
    v_mov_b32 v{T0+4}, 0x3f803f80
    v_and_b32 v{T0+5}, 31, v{T0}        ; q
    v_cndmask_b32 v{ONES}, 0, v{T0+4}, vcc
    v_lshrrev_b32 v{T0+6}, 5, v{T0}
    v_lshlrev_b32 v{T0+6}, 2, v{T0+6}   ; 4*hi
    v_sub_u32 v{T0+5}, v{T0+5}, v{T0+6} ; q - 4hi
    v_mov_b32 v{ONES+1}, v{ONES}
    v_mov_b32 v{ONES+2}, v{ONES}
    v_mov_b32 v{ONES+3}, v{ONES}
    v_mov_b32 v{T0+4}, {NINF}
    """)
    for r in range(0, 16, 2):
        for rr, sp in ((r, "s[24:25]"), (r + 1, "s[26:27]")):
            c = 8 * (rr >> 2) + (rr & 3)
            a(f"v_cmp_le_i32 {sp}, {c}, v{T0+5}")
        a("s_nop 0")
        for rr, sp in ((r, "s[24:25]"), (r + 1, "s[26:27]")):
            a(f"v_cndmask_b32 v{MD+rr}, v{T0+4}, 0, {sp}")
            a(f"v_cndmask_b32 v{M1+rr}, 0, v{T0+4}, {sp}")
    def zero_acc():
        for sl in range(2):
            for r in range(16): a(f"v_mov_b32 v{O[sl]+r}, 0")
            for r in range(4): a(f"v_mov_b32 v{L[sl]+r}, 0")
    zero_acc()

    def mf_S(slot, Q, K, C):
        return [f"v_mfma_f32_32x32x16_bf16 {vr(S[slot],16)}, {vr(K,4)}, {vr(Q,4)}, {C}",
                f"v_mfma_f32_32x32x16_bf16 {vr(S[slot],16)}, {vr(K+4,4)}, {vr(Q+4,4)}, {vr(S[slot],16)}"]
    def mf_PV(slot, V):
        return [f"v_mfma_f32_32x32x16_bf16 {vr(O[slot],16)}, {vr(V,4)}, {vr(P[slot],4)}, {vr(O[slot],16)}",
                f"v_mfma_f32_16x16x32_bf16 {vr(L[slot],4)}, {vr(ONES,4)}, {vr(P[slot],4)}, {vr(L[slot],4)}",
                f"v_mfma_f32_32x32x16_bf16 {vr(O[slot],16)}, {vr(V+4,4)}, {vr(P[slot]+4,4)}, {vr(O[slot],16)}",
                f"v_mfma_f32_16x16x32_bf16 {vr(L[slot],4)}, {vr(ONES,4)}, {vr(P[slot]+4,4)}, {vr(L[slot],4)}"]
    def softmax(slot):
        s_, p_ = S[slot], P[slot]
        v = []
        for i in range(8):
            v.append(f"v_exp_f32 v{s_+2*i}, v{s_+2*i}")
            v.append(f"v_exp_f32 v{s_+2*i+1}, v{s_+2*i+1}")
            if i > 0: v.append(f"v_cvt_pk_bf16_f32 v{p_+i-1}, v{s_+2*i-2}, v{s_+2*i-1}")
        v.append(f"v_cvt_pk_bf16_f32 v{p_+7}, v{s_+14}, v{s_+15}")
        return v
    POS6 = cfg.get("p2_pos6", [0, 4, 8, 12, 16, 20])
    def phase(slot, smf, pvmf, extra=(), pre=()):
        for x in pre: a(x)
        v = softmax(slot)
        m = []
        if smf and pvmf: m = [smf[0], pvmf[0], pvmf[1], smf[1], pvmf[2], pvmf[3]]
        elif smf: m = [smf[0], smf[1]]
        elif pvmf: m = list(pvmf)
        nv = len(v)
        if len(m) == 6: pos = POS6
        elif len(m) == 4: pos = [4, 8, 14, 18]
        elif len(m) == 2: pos = [0, 8]
        else: pos = []
        out = []
        ex = list(extra)
        for i in range(nv + 1):
            for k, p in enumerate(pos):
                if p == i:
                    out.append(m[k])
                    if ex: out.append(ex.pop(0))
            if i < nv: out.append(v[i])
        out += ex
        for x in out: a(x)

    def rd_set(buf, addr, offK, offV):
        return [f"ds_read_b128 {vr(KB[buf],4)}, v{addr} offset:{offK}",
                f"ds_read_b128 {vr(VB[buf],4)}, v{addr} offset:{offV}",
                f"ds_read_b128 {vr(KB[buf]+4,4)}, v{addr} offset:{offK+1024}",
                f"ds_read_b128 {vr(VB[buf]+4,4)}, v{addr} offset:{offV+1024}"]

    a("s_waitcnt vmcnt(4)\ns_barrier")
    pr.stamp()
    for x in rd_set(0, RB, 2048, 0): a(x)
    for x in mf_S(0, QB_[0], KB[1], "0"): a(x)
    a("s_nop 7\ns_nop 3")
    phase(0, mf_S(1, QB_[1], KB[1], "0"), [])
    a(f"s_mov_b32 s20, 0\ns_mov_b32 s21, 15\ns_mov_b32 s37, {-16384*(NSLOT-1)}\ns_mov_b32 s38, 16384")
    def bbody(kind):
        for jj in range(4):
            buf = jj & 1
            pre = ["s_waitcnt lgkmcnt(0)"]
            lastt = kind == "last" and jj == 3
            if jj == 2 and kind != "last":
                pass
            if jj == 3:
                pre += ["s_barrier"]
                if kind != "last":
                    pre += [f"v_add_u32 v{RB}, s22, v{RB}"]
                    extra = rd_set(buf ^ 1, RB, 2048, 0)
                else:
                    extra = rd_set(0, AB, 8 * 4096, 9 * 4096 + 2048)
                    extra += [f"ds_read_b128 {vr(KB[1],4)}, v{AB} offset:{9*4096}", f"ds_read_b128 {vr(KB[1]+4,4)}, v{AB} offset:{9*4096+1024}"]
            else:
                extra = rd_set(buf ^ 1, RB, (jj + 1) * 4096 + 2048, (jj + 1) * 4096)
            phase(1, [] if lastt else mf_S(0, QB_[0], KB[buf], "0"), mf_PV(0, VB[buf]), extra=extra, pre=pre)
            if lastt: break
            extra = []
            if jj == 1 and kind == "loop":
                extra = ["s_add_u32 s20, s20, 1", f"s_cmp_eq_u32 s20, {NSLOT}", "s_cselect_b32 s22, s37, s38", "s_cselect_b32 s20, 0, s20"]
            if jj == 3 and kind == "loop": extra = ["s_sub_u32 s21, s21, 1", "s_cmp_lg_u32 s21, 0"]
            phase(0, mf_S(1, QB_[1], KB[buf], "0"), mf_PV(1, VB[buf]), extra=extra)
    a(".p2align 6")
    a.label("p2_bloop")
    bbody("loop")
    a("s_cbranch_scc1 p2_bloop")
    bbody("last")
    a("s_nop 1")
    for x in mf_PV(1, VB[1]): a(x)
    pr.stamp()

    def finish(part):
        slow = f"p2_slow{part}"; back = f"p2_back{part}"
        a("s_nop 7\ns_nop 7")
        for k in (0, 1, 4, 5): a(f"v_mov_b32 v{T0+k}, 0")
        for sl in range(2):
            for j in range(8):
                a(f"v_pk_fma_f32 {vr(T0,2)}, {vr(O[sl]+2*j,2)}, {vr(T0+4,2)}, {vr(T0,2)}")
        a(f"v_add_f32 v{T0}, v{T0}, v{T0+1}")
        a(f"v_mov_b32 v{T0+2}, 0x21800000      ; 2^-60")
        a(f"v_mov_b32 v{T0+3}, 0x5d800000      ; 2^60")
        a(f"v_cmp_eq_f32 s[24:25], 0, v{T0}")
        for sl in range(2):
            a(f"v_cmp_gt_f32 s[26:27], v{L[sl]}, v{T0+2}")
            a(f"v_cmp_lt_f32 s[28:29], v{L[sl]}, v{T0+3}")
            a("s_and_b64 s[24:25], s[24:25], s[26:27]")
            a("s_and_b64 s[24:25], s[24:25], s[28:29]")
        if cfg.get("force_slow"):
            a("s_mov_b64 s[24:25], 0")
        a("s_cmp_eq_u64 s[24:25], -1")
        a(f"s_cbranch_scc0 {slow}")
        a.label(back)
        base = WS_OB if part == "B" else WS_OA
        a(f"""
        s_lshl_b32 s7, s12, 16
        s_lshl_b32 s19, s4, 11
        s_add_u32 s7, s7, s19
        s_add_u32 s7, s7, {base}
        v_rcp_f32 v{T0}, v{L[0]}
        v_rcp_f32 v{T0+2}, v{L[1]}
        s_nop 0
        v_mov_b32 v{T0+1}, v{T0}
        v_mov_b32 v{T0+3}, v{T0+2}
        """)
        for sl in range(2):
            o = O[sl]
            for j in range(8): a(f"v_pk_mul_f32 {vr(o+2*j,2)}, {vr(o+2*j,2)}, {vr(T0+2*sl,2)}")
            for j in range(8): a(f"v_cvt_pk_bf16_f32 v{o+j}, v{o+2*j}, v{o+2*j+1}")
            if sl: a("s_add_u32 s7, s7, 65536")
            a(f"buffer_store_dwordx4 {vr(o,4)}, v{LN}, s[8:11], s7 offen{st_mod}")
            a(f"buffer_store_dwordx4 {vr(o+4,4)}, v{LN}, s[8:11], s7 offen offset:1024{st_mod}")
    finish("B")
    pr.stamp()

    a("s_nop 1")
    zero_acc()
    a(f"""
    s_lshl_b32 s30, s3, 1
    s_cmp_eq_u32 s5, 0
    s_cselect_b32 s30, s30, -1          ; exit j
    s_waitcnt vmcnt(4) lgkmcnt(0)
    """)
    items = [(1, 1, vr(MD,16)), (0, 0, vr(MD,16)), (1, 0, "0")]
    for j in range(1, 7): items += [(0, -j, "0"), (1, -j, "0")]
    items += [(0, -7, "0"), (1, -7, vr(M1,16)), (0, -8, vr(M1,16))]
    assert len(items) == 18
    offK = lambda j: (8 + j) * 4096
    offV = lambda j: (8 + j) * 4096 + 2048
    for x in mf_S(1, QA_[1], KB[1], items[0][2]): a(x)
    a("s_nop 7\ns_nop 3")
    for n in range(18):
        slot = items[n][0]
        setj = n >> 1
        buf = setj & 1
        pre = []; extra = []
        if n % 2 == 0:
            if n > 0: pre = ["s_waitcnt lgkmcnt(0)"]
            nj = setj + 1
            if nj <= 8: extra = rd_set(buf ^ 1, AB, offK(-nj), offV(-nj + 1))
            elif nj == 9: extra = [f"ds_read_b128 {vr(VB[buf^1]+4*k,4)}, v{AB} offset:{offV(-8)+1024*k}" for k in range(2)]
        smf = []
        if n + 1 < 18:
            nslot, nk, nC = items[n + 1]
            smf = mf_S(nslot, QA_[nslot], KB[buf], nC)
        pv = mf_PV(items[n - 1][0], VB[buf]) if n >= 1 else []
        phase(slot, smf, pv, extra=extra, pre=pre)
        if n in (2, 6, 10, 14):
            a(f"s_cmp_eq_u32 s30, {(n-2)//2}")
            a("s_cbranch_scc1 p2_drainB")
    a("s_waitcnt lgkmcnt(0)")
    for x in mf_PV(0, VB[1]): a(x)
    a("s_branch p2_adone")
    a.label("p2_drainB")
    a("s_waitcnt lgkmcnt(0)")
    for x in mf_PV(1, VB[1]): a(x)
    a.label("p2_adone")
    pr.stamp()
    finish("A")
    pr.flush(T0)
    a("s_endpgm")

    def slow(part):
        a.label(f"p2_slow{part}")
        Q = QB_ if part == "B" else QA_
        CB = T0 + 16
        K_, V_ = 224, 232
        if part == "B": a("s_waitcnt vmcnt(0)")
        for sl in range(2):
            a(f"s_add_u32 s35, s12, {sl}")
            if part == "B":
                a(f"s_mov_b32 s32, 0\ns_mov_b32 s33, 63\ns_mov_b32 s34, {WS_KVB}")
            else:
                a(f"s_sub_u32 s32, s35, 8\ns_max_i32 s32, s32, 0\ns_mov_b32 s33, s35\ns_lshl_b32 s34, s4, 18\ns_add_u32 s34, s34, {WS_KVA}")
            a(f"""
            v_lshrrev_b32 v{T0+5}, 4, v{LN}        ; lane
            v_and_b32 v{T0+4}, 31, v{T0+5}
            v_lshrrev_b32 v{T0+5}, 5, v{T0+5}
            v_lshlrev_b32 v{T0+5}, 2, v{T0+5}
            v_sub_u32 v{T0+4}, v{T0+4}, v{T0+5}
            s_lshl_b32 s7, s35, 5
            v_add_u32 v{T0+4}, s7, v{T0+4}
            v_mov_b32 v{T0+6}, {NINF}
            v_mov_b32 v{T0+7}, {NINF}
            """)
            def cblock(val):
                if part == "B":
                    for r in range(16): a(f"v_mov_b32 v{CB+r}, {val}")
                else:
                    a("s_lshl_b32 s7, s36, 5")
                    a(f"v_subrev_u32 v{T0+5}, s7, v{T0+4}")
                    for r in range(16):
                        c = 8 * (r >> 2) + (r & 3)
                        a(f"v_subrev_u32 v{T0+9}, {c}, v{T0+5}")
                        a(f"v_cmp_gt_u32 vcc, 0x100, v{T0+9}")
                        a("s_nop 1")
                        a(f"v_cndmask_b32 v{CB+r}, v{T0+7}, {val}, vcc")
            def loadK(withV):
                a("s_lshl_b32 s7, s36, 12\ns_add_u32 s7, s7, s34")
                for k in range(2): a(f"buffer_load_dwordx4 {vr(K_+4*k,4)}, v{LN}, s[8:11], s7 offen offset:{1024*k}")
                if withV:
                    for k in range(2): a(f"buffer_load_dwordx4 {vr(V_+4*k,4)}, v{LN}, s[8:11], s7 offen offset:{2048+1024*k}")
            l1 = a.newlabel("p2_s1"); l2 = a.newlabel("p2_s2")
            a("s_mov_b32 s36, s32")
            a.label(l1)
            loadK(False)
            cblock("0")
            a("s_waitcnt vmcnt(0)\ns_nop 1")
            for x in mf_S(sl, Q[sl], K_, vr(CB, 16)): a(x)
            a("s_nop 7\ns_nop 7")
            for r in range(0, 16, 2): a(f"v_max3_f32 v{T0+6}, v{S[sl]+r}, v{S[sl]+r+1}, v{T0+6}")
            a(f"s_add_u32 s36, s36, 1\ns_cmp_le_u32 s36, s33\ns_cbranch_scc1 {l1}")
            a(f"""
            v_mov_b32 v{T0+8}, v{T0+6}
            s_nop 1
            v_permlane32_swap_b32 v{T0+6}, v{T0+8}
            s_nop 1
            v_max_f32 v{T0+6}, v{T0+6}, v{T0+8}
            v_sub_f32 v{T0+6}, 0, v{T0+6}          ; -max
            """)
            for r in range(16): a(f"v_mov_b32 v{O[sl]+r}, 0")
            for r in range(4): a(f"v_mov_b32 v{L[sl]+r}, 0")
            a("s_mov_b32 s36, s32")
            a.label(l2)
            loadK(True)
            cblock(f"v{T0+6}")
            a("s_waitcnt vmcnt(0)\ns_nop 1")
            for x in mf_S(sl, Q[sl], K_, vr(CB, 16)): a(x)
            a("s_nop 7\ns_nop 7")
            for x in softmax(sl): a(x)
            a("s_nop 1")
            for x in mf_PV(sl, V_): a(x)
            a(f"s_nop 7\ns_nop 7\ns_add_u32 s36, s36, 1\ns_cmp_le_u32 s36, s33\ns_cbranch_scc1 {l2}")
        a("s_nop 7\ns_nop 7")
        a(f"s_branch p2_back{part}")
    slow("B"); slow("A")

    a.label("p2_loader")
    a(f"""
    s_sub_u32 s3, s3, 4
    s_lshl_b32 s15, s3, 12                ; lw*4096
    s_add_u32 s16, s15, {WS_KVB + 2048}
    s_add_u32 s17, s15, {RING}
    s_lshl_b32 s7, s5, 3
    s_lshl_b32 s19, s3, 2
    s_add_u32 s7, s7, s19
    s_sub_u32 s7, s7, 8
    s_max_i32 s7, s7, 0
    s_lshl_b32 s7, s7, 12
    s_lshl_b32 s19, s4, 18
    s_add_u32 s7, s7, s19
    s_add_u32 s20, s7, {WS_KVA}
    s_lshl_b32 s21, s3, 14                ; A dest
    """)
    pf = cfg.get("wo_prefetch", 1)
    if pf:
        a(f"""
        s_bitcmp1_b32 s2, 2
        s_cbranch_scc1 p2_woB
        s_load_dwordx2 s[12:13], s[0:1], {KA_AWO}
        s_branch p2_woj
p2_woB:
        s_load_dwordx2 s[12:13], s[0:1], {KA_BWO}
p2_woj:
        s_mov_b32 s14, {hex(2*MB)}
        s_mov_b32 s15, 0x20000
        s_lshr_b32 s7, s2, 3
        s_lshl_b32 s7, s7, 16
        s_lshl_b32 s19, s3, 14
        s_add_u32 s22, s7, s19
        v_lshlrev_b32 v1, 7, v0           ; lane*128
        """)
    a("s_waitcnt lgkmcnt(0)")
    vt = VmTrack()
    def chunk(c):
        a(f"s_add_u32 m0, s17, {16384*(c % NSLOT)}")
        a(f"s_add_u32 s19, s16, {16384*c}")
        for t in range(4): a(f"buffer_load_dwordx4 v{LN}, s[8:11], s19 offen offset:{1024*t} lds")
        vt.issue(f"c{c}", 4)
    def aload():
        for t in range(4):
            a(f"s_add_u32 m0, s21, {AREG + 4096*t}")
            a(f"s_add_u32 s19, s20, {4096*t}")
            for k in range(4): a(f"buffer_load_dwordx4 v{LN}, s[8:11], s19 offen offset:{1024*k} lds")
        vt.issue("A", 16)
    def touch(k):
        a(f"s_add_u32 s19, s22, {8192*k}")
        a(f"buffer_load_dword v{2+k}, v1, s[12:15], s19 offen")
        vt.issue("pf", 1)
    D = NSLOT - 1
    chunk(0)
    chunk(1)
    a(f"s_waitcnt vmcnt({vt.need('c0')})\ns_barrier")
    for c in range(2, D + 1): chunk(c)
    aload()
    for c in range(16):
        tag = f"c{c+1}" if c < 15 else "A"
        a(f"s_waitcnt vmcnt({vt.need(tag)})\ns_barrier")
        if c + D + 1 <= 15 + 0 and c + D + 1 > D: chunk(c + D + 1) if c + D + 1 <= 15 else None
        if pf and c in (5, 9): touch(0 if c == 5 else 1)
    a("s_waitcnt vmcnt(0)")
    if cfg.get("prof"): a("s_add_u32 s3, s3, 4")
    pr.at(2); pr.stamp(); pr.stamp(); pr.stamp(); pr.stamp(); pr.flush(8)
    a("s_endpgm")
    a.label("p2_exit")
    a("s_endpgm")
    return a.text(), descriptor(NAME, 256, 256), RING + 16384 * NSLOT

if __name__ == "__main__":
    t, d, lds = gen_p2({})
    print(len(t.split("\n")), "lines; lds", lds)
    check(t)
```

```python
from asmlib import *
from common import *

STG = 32768
NST = 4
OO, WO = 0, 16384
NAME = "concat_heads__sliding_block__grouped_kv_mqa__prompt_kernel"

def gen_p3(cfg, name=NAME):
    st_mod = cfg.get("p3_store", "")
    a = Asm()
    pr = Prof(a, cfg.get("prof"), 2, 8)
    a(khead(name))
    pr.stamp(True); pr.stamp()
    a(f"""
    s_cmp_ge_u32 s2, 256
    s_cbranch_scc1 p3_exit
    v_lshrrev_b32 v1, 6, v0
    v_and_b32 v0, 63, v0
    s_and_b32 s7, s2, 7
    v_readfirstlane_b32 s3, v1
    s_lshr_b32 s4, s7, 2
    s_and_b32 s7, s7, 3
    s_lshl_b32 s7, s7, 2
    s_lshr_b32 s6, s2, 3
    s_and_b32 s5, s6, 3
    s_add_u32 s5, s5, s7
    s_lshr_b32 s6, s6, 2
    s_load_dwordx2 s[8:9], s[0:1], {KA_WS}
    s_load_dwordx2 s[20:21], s[0:1], {KA_OUT}
    s_cmp_eq_u32 s4, 1
    s_cbranch_scc1 p3_isB
    s_load_dwordx2 s[12:13], s[0:1], {KA_AWO}
    s_branch p3_ptrs
p3_isB:
    s_load_dwordx2 s[12:13], s[0:1], {KA_BWO}
p3_ptrs:
    s_mov_b32 s10, {hex(WS_SIZE)}
    s_mov_b32 s11, 0x20000
    s_mov_b32 s14, {hex(2*MB)}
    s_mov_b32 s15, 0x20000
    s_mov_b32 s22, {hex(8*MB)}
    s_mov_b32 s23, 0x20000
    s_cmp_ge_u32 s3, 4
    s_cbranch_scc1 p3_loader
    """)
    ACC = 0
    OF = 64
    WF = 80
    OA_ = 96; WA = 97
    T0 = 100
    of = lambda st, mi: OF + 8 * st + 4 * mi
    wf = lambda st, tt: WF + 8 * st + 4 * tt
    acc = lambda mi, tt: ACC + 16 * (2 * mi + tt)
    a(f"""
    s_lshr_b32 s24, s3, 1               ; wm
    s_and_b32 s25, s3, 1                ; wn
    v_mov_b32 v99, v0
    v_lshlrev_b32 v{OA_}, 4, v0
    s_lshl_b32 s7, s24, 13
    v_add_u32 v{OA_}, s7, v{OA_}
    v_lshrrev_b32 v{T0}, 5, v0          ; hi
    v_lshrrev_b32 v{T0+1}, 2, v0
    v_and_b32 v{T0+1}, 3, v{T0+1}       ; r
    v_and_b32 v{T0+2}, 3, v0            ; c4
    v_lshrrev_b32 v{T0+3}, 4, v0
    v_and_b32 v{T0+3}, 1, v{T0+3}
    v_lshlrev_b32 v{T0+3}, 5, v{T0+3}
    v_lshl_add_u32 v{T0+3}, v{T0+2}, 3, v{T0+3}    ; (g&1)*32 + c4*8
    v_lshl_add_u32 v{T0+4}, v{T0}, 2, v{T0+1}      ; 4hi + r
    v_lshl_add_u32 v{T0+3}, v{T0+4}, 8, v{T0+3}
    v_add_u32 v{T0+3}, {WO}, v{T0+3}
    s_lshl_b32 s7, s25, 1
    """)
    for tt in range(2):
        a(f"s_add_u32 s26, s7, {tt}")
        a(f"v_xor_b32 v{T0+4}, s26, v{T0+1}")
        a(f"v_lshl_add_u32 v{WA+tt}, v{T0+4}, 6, v{T0+3}")
    for i in range(64): a(f"v_mov_b32 v{ACC+i}, 0")
    a(f"s_mov_b32 s26, 0\ns_mov_b32 s28, 15\ns_mov_b32 s50, {-(NST-1)*STG}\ns_mov_b32 s51, {STG}")

    def reads(st, s):
        o = lambda mi: f"ds_read_b128 {vr(of(st,mi),4)}, v{OA_} offset:{4096*mi + 1024*s}"
        w = lambda tt, h: f"ds_read_b64_tr_b16 {vr(wf(st,tt)+2*h,2)}, v{WA+tt} offset:{4096*s+2048*h}"
        return [[o(0), w(0,0), w(0,1)], [w(1,0), w(1,1), o(1)], [], []]
    def body(last):
        for s in range(4):
            st = s & 1
            mf = []
            for mi in range(2):
                for tt in range(2):
                    mf.append(f"v_mfma_f32_32x32x16_bf16 {vr(acc(mi,tt),16)}, {vr(wf(st,tt),4)}, {vr(of(st,mi),4)}, {vr(acc(mi,tt),16)}")
            gaps = [[] for _ in mf]
            a("s_waitcnt lgkmcnt(0)")
            if s == 3:
                if not last:
                    a("s_barrier")
                    g = reads(st ^ 1, 0)
                    add = lambda r: f"v_add_u32 v{r}, s27, v{r}"
                    gaps[0] = [add(OA_), add(WA)] + g[0]
                    gaps[1] = [add(WA+1)] + g[1]
                    gaps[2] = ["s_sub_u32 s28, s28, 1", "s_cmp_lg_u32 s28, 0"]
            else:
                g = reads(st ^ 1, s + 1)
                gaps[0] = g[0]; gaps[1] = g[1]
                if s == 0 and not last:
                    gaps[2] = ["s_add_u32 s26, s26, 1", f"s_cmp_eq_u32 s26, {NST}"]
                    gaps[3] = ["s_cselect_b32 s27, s50, s51", "s_cselect_b32 s26, 0, s26"]
            for m, g in zip(mf, gaps):
                a(m)
                for x in g: a(x)
    a("s_waitcnt lgkmcnt(0)\ns_barrier")
    pr.stamp()
    for g in reads(0, 0):
        for x in g: a(x)
    a(".p2align 6")
    a.label("p3_loop")
    body(False)
    a("s_cbranch_scc1 p3_loop")
    body(True)
    pr.stamp()
    a(f"""
    s_nop 7
    s_nop 3
    v_and_b32 v{T0}, 31, v99              ; tok (l&31)
    v_lshrrev_b32 v{T0+1}, 5, v99         ; hi
    v_and_b32 v{T0+2}, 7, v99             ; tok&7
    v_lshlrev_b32 v{T0+3}, 7, v{T0}      ; tok*128
    v_lshl_add_u32 v{T0+3}, v{T0+1}, 3, v{T0+3}
    s_lshl_b32 s7, s3, 13
    v_add_u32 v{T0+3}, s7, v{T0+3}
    """)
    for u in range(8):
        a(f"v_xor_b32 v{T0+4}, {u}, v{T0+2}")
        a(f"v_lshl_add_u32 v{T0+8+u}, v{T0+4}, 4, v{T0+3}")
    for mi in range(2):
        for tt in range(2):
            r = acc(mi, tt)
            for j in range(8): a(f"v_cvt_pk_bf16_f32 v{r+j}, v{r+2*j}, v{r+2*j+1}")
            for q in range(4):
                a(f"ds_write_b64 v{T0+8+4*tt+q}, {vr(r+2*q,2)} offset:{4096*mi}")
    a(f"""
    v_lshrrev_b32 v{T0}, 3, v99           ; row
    v_and_b32 v{T0+1}, 7, v99
    v_xor_b32 v{T0+2}, v{T0}, v{T0+1}
    v_and_b32 v{T0+2}, 7, v{T0+2}
    v_lshlrev_b32 v{T0+2}, 4, v{T0+2}
    v_lshl_add_u32 v{T0+2}, v{T0}, 7, v{T0+2}
    s_lshl_b32 s7, s3, 13
    v_add_u32 v{T0+2}, s7, v{T0+2}
    v_lshlrev_b32 v{T0+3}, 12, v{T0}
    v_lshl_add_u32 v{T0+3}, v{T0+1}, 4, v{T0+3}
    s_lshl_b32 s7, s5, 7
    s_lshl_b32 s26, s24, 6
    s_add_u32 s7, s7, s26
    s_lshl_b32 s7, s7, 12                ; token0*4096
    s_lshl_b32 s26, s4, 11
    s_add_u32 s7, s7, s26
    s_lshl_b32 s26, s6, 8
    s_add_u32 s7, s7, s26
    s_lshl_b32 s26, s25, 7
    s_add_u32 s7, s7, s26
    s_waitcnt lgkmcnt(0)
    """)
    for j in range(8):
        a(f"ds_read_b128 {vr(4*j,4)}, v{T0+2} offset:{1024*j}")
    for j in range(8):
        a(f"s_waitcnt lgkmcnt({7-j})")
        a(f"buffer_store_dwordx4 {vr(4*j,4)}, v{T0+3}, s[20:23], s7 offen{st_mod}")
        if j < 7: a(f"s_add_u32 s7, s7, {8*4096}")
    pr.flush(T0)
    a("s_endpgm")

    a.label("p3_loader")
    a(f"""
    s_sub_u32 s24, s3, 4                 ; lw
    v_lshlrev_b32 v1, 4, v0
    s_lshl_b32 s7, s5, 2
    s_add_u32 s7, s7, s24
    s_lshl_b32 s7, s7, 16                ; tb*65536
    s_cmp_eq_u32 s4, 1
    s_mov_b32 s26, {WS_OA}
    s_cselect_b32 s26, {WS_OB}, s26
    s_add_u32 s7, s7, s26
    v_add_u32 v1, s7, v1
    v_lshrrev_b32 v5, 4, v0              ; row_l
    v_lshlrev_b32 v4, 2, v5
    v_and_b32 v6, 15, v0
    v_xor_b32 v4, v4, v6
    v_lshlrev_b32 v4, 4, v4
    s_lshl_b32 s7, s24, 2
    v_add_u32 v5, s7, v5
    v_lshl_add_u32 v2, v5, 11, v4
    s_lshl_b32 s7, s6, 8
    v_add_u32 v2, s7, v2
    s_lshl_b32 s40, s24, 12
    s_lshl_b32 s39, s24, 10
    s_mov_b32 s42, 0
    """)
    if cfg.get("p3_rot", 0):
        a("s_lshl_b32 s41, s6, 1\ns_add_u32 s41, s41, s5\ns_and_b32 s41, s41, 15")
    else:
        a("s_mov_b32 s41, 0")
    a("s_waitcnt lgkmcnt(0)")
    def issue():
        a("s_lshl_b32 s43, s41, 12")
        a("s_lshl_b32 s44, s41, 17")
        a("s_add_u32 s46, s42, s39")
        for t in range(4):
            if t == 0:
                a(f"s_add_u32 m0, s42, s40")
                a("s_nop 0")
            if t == 0 or True:
                pass
            a(f"buffer_load_dwordx4 v1, s[8:11], s43 offen offset:{1024*t} lds")
        for t in range(4):
            a(f"s_add_u32 m0, s46, {WO + 4096*t}")
            a(f"s_add_u32 s45, s44, {16*2048*t}")
            a(f"buffer_load_dwordx4 v2, s[12:15], s45 offen lds")
        a(f"""
        s_add_u32 s41, s41, 1
        s_and_b32 s41, s41, 15
        s_add_u32 s42, s42, {STG}
        s_cmp_ge_u32 s42, {NST*STG}
        s_cselect_b32 s42, 0, s42
        """)
    G = 8
    for _ in range(NST - 1): issue()
    a(f"s_mov_b32 s47, {16-(NST-1)}")
    a.label("p3_ld")
    a(f"s_waitcnt vmcnt({G*(NST-2)})\ns_barrier")
    issue()
    a("s_sub_u32 s47, s47, 1\ns_cmp_lg_u32 s47, 0\ns_cbranch_scc1 p3_ld")
    for k in range(NST - 2, -1, -1):
        a(f"s_waitcnt vmcnt({G*k})\ns_barrier")
    pr.at(2); pr.stamp(); pr.stamp(); pr.flush(8)
    a("s_endpgm")
    a.label("p3_exit")
    a("s_endpgm")
    return a.text(), descriptor(name, 128, 128), NST * STG

if __name__ == "__main__":
    t, d, lds = gen_p3({})
    print(len(t.split("\n")), "lines; lds", lds)
    check(t)
```

```python
from asmlib import *
from common import *

STG = 53248
XO, WO, KVO = 0, 16384, 49152
NAME = "p1_kernel"

def gen_p1(cfg):
    rot = cfg.get("p1_rot", 1)
    st_mod = cfg.get("p1_store", "")
    a = Asm()
    pr = Prof(a, cfg.get("prof"), 0, 20)
    a(khead(NAME))
    pr.stamp(True); pr.stamp()
    a(f"""
    s_cmp_ge_u32 s2, 256
    s_cbranch_scc1 p1_exit
    v_lshrrev_b32 v1, 6, v0
    v_and_b32 v0, 63, v0
    s_and_b32 s7, s2, 7
    v_readfirstlane_b32 s3, v1
    s_lshr_b32 s4, s7, 1
    s_and_b32 s7, s7, 1
    s_lshl_b32 s7, s7, 3
    s_lshr_b32 s6, s2, 3
    s_and_b32 s5, s6, 7
    s_add_u32 s5, s5, s7
    s_lshr_b32 s6, s6, 3
    s_load_dwordx2 s[20:21], s[0:1], {KA_WS}
    s_cmp_eq_u32 s4, 3
    s_cbranch_scc1 p1_isB
    s_load_dwordx2 s[8:9], s[0:1], {KA_AX}
    s_load_dwordx2 s[12:13], s[0:1], {KA_AWQKV}
    s_load_dwordx2 s[16:17], s[0:1], {KA_AWQKV}
    s_mov_b32 s14, {hex(6*MB)}
    s_mov_b32 s18, 0
    s_branch p1_ptrs
p1_isB:
    s_load_dwordx2 s[8:9], s[0:1], {KA_BX}
    s_load_dwordx2 s[12:13], s[0:1], {KA_BWQ}
    s_mov_b32 s14, {hex(2*MB)}
    s_mov_b32 s18, 0x10000
    s_bitcmp1_b32 s6, 0
    s_cbranch_scc1 p1_isBV
    s_load_dwordx2 s[16:17], s[0:1], {KA_BWK}
    s_branch p1_ptrs
p1_isBV:
    s_load_dwordx2 s[16:17], s[0:1], {KA_BWV}
p1_ptrs:
    s_mov_b32 s10, {hex(4*MB)}
    s_mov_b32 s11, 0x20000
    s_mov_b32 s15, 0x20000
    s_mov_b32 s19, 0x20000
    s_mov_b32 s22, {hex(WS_SIZE)}
    s_mov_b32 s23, 0x20000
    s_cmp_ge_u32 s3, 4
    s_cbranch_scc1 p1_loader
    """)
    ACC = 0
    XF = 128
    WF = 144
    KF = 176
    KACC = 184
    XA = 200
    WA = 204
    KA = 208
    LN = 209
    T0 = 210
    xf = lambda st, mi: XF + 8 * st + 4 * mi
    wf = lambda st, tt: WF + 16 * st + 4 * tt
    kf = lambda st: KF + 4 * st
    acc = lambda mi, tt: ACC + 16 * (4 * mi + tt)
    cpf = cfg.get("p1_cpf", 0)
    TV, TD = 218, 219
    if cpf:
        a(f"""
        s_lshr_b32 s7, s2, 3               ; idx 0..31
        s_and_b32 s26, s2, 1
        s_lshl_b32 s26, s26, 10
        s_lshl_b32 s27, s7, 5
        s_add_u32 s26, s26, s27
        s_and_b32 s27, s3, 1
        s_lshl_b32 s28, s27, 4
        s_add_u32 s26, s26, s28
        s_lshl_b32 s26, s26, 11
        s_lshl_b32 s7, s7, 1
        s_add_u32 s7, s7, s27
        s_mov_b32 s28, 6144
        s_lshl_b32 s27, s4, 11
        s_cmp_eq_u32 s4, 3
        s_cselect_b32 s28, 2048, s28
        s_cselect_b32 s27, 0, s27
        s_mul_i32 s7, s7, s28
        s_add_u32 s7, s7, s27
        s_lshl_b32 s28, s28, 6
        v_lshrrev_b32 v{TV}, 2, v0
        v_lshlrev_b32 v{TV}, 11, v{TV}
        v_and_b32 v{TD}, 3, v0
        v_lshl_add_u32 v{TV}, v{TD}, 5, v{TV}
        v_add_u32 v{TV}, s26, v{TV}
        v_lshlrev_b32 v{TD}, 5, v0
        v_add_u32 v{TD}, s7, v{TD}
        s_mov_b32 s48, 128
        s_cmp_ge_u32 s3, 2
        s_cselect_b64 vcc, -1, 0
        s_cselect_b32 s48, s28, s48
        v_cndmask_b32 v{TV}, v{TV}, v{TD}, vcc
        s_waitcnt lgkmcnt(0)
        s_cselect_b32 s52, s12, s8
        s_cselect_b32 s53, s13, s9
        s_cselect_b32 s54, s14, s10
        s_mov_b32 s55, 0x20000
        """)
        first = cfg.get("p1_cpf0", 2)
        a(f"s_mul_i32 s7, s48, {first}")
        for sl in range(first, cpf):
            a(f"buffer_load_dword v{TD}, v{TV}, s[52:55], s7 offen")
            a("s_add_u32 s7, s7, s48")
        a(f"s_mov_b32 s49, s7\ns_mul_i32 s53, s48, 15" if False else f"s_mov_b32 s49, s7\ns_mul_i32 s56, s48, 15")
        a(f"""
        s_cmp_eq_u32 s4, 3
        s_cbranch_scc0 p1_nokvpf
        s_lshr_b32 s7, s2, 3
        s_lshr_b32 s26, s7, 4
        s_lshl_b32 s26, s26, 3
        s_and_b32 s7, s7, 7
        s_add_u32 s7, s7, s26
        s_lshl_b32 s7, s7, 12
        s_lshl_b32 s26, s3, 10
        s_add_u32 s7, s7, s26
        v_lshlrev_b32 v{TD+1}, 4, v0
        buffer_load_dword v{TD}, v{TD+1}, s[16:19], s7 offen
p1_nokvpf:
        """)
    a(f"""
    s_lshr_b32 s24, s3, 1
    s_and_b32 s25, s3, 1
    v_mov_b32 v{T0}, v0
    v_and_b32 v{T0+1}, 31, v{T0}            ; l&31
    v_lshrrev_b32 v{T0+2}, 5, v{T0}         ; hi
    v_lshrrev_b32 v{T0+3}, 1, v{T0}
    v_and_b32 v{T0+3}, 7, v{T0+3}           ; z
    v_xor_b32 v{T0+3}, v{T0+3}, v{T0+2}     ; hi^z
    v_lshlrev_b32 v{T0+3}, 4, v{T0+3}
    v_lshl_add_u32 v{T0+3}, v{T0+1}, 7, v{T0+3}   ; tok*128 + ..
    s_lshl_b32 s7, s24, 13                   ; wm*64*128
    v_add_u32 v{XA}, s7, v{T0+3}
    v_xor_b32 v{XA+1}, 32, v{XA}
    v_xor_b32 v{XA+2}, 64, v{XA}
    v_xor_b32 v{XA+3}, 0x60, v{XA}
    v_lshrrev_b32 v{T0+3}, 2, v{T0}
    v_and_b32 v{T0+3}, 3, v{T0+3}           ; r
    v_and_b32 v{T0+4}, 3, v{T0}             ; c4
    v_lshrrev_b32 v{T0+5}, 4, v{T0}
    v_and_b32 v{T0+5}, 1, v{T0+5}           ; g&1
    v_lshlrev_b32 v{T0+5}, 5, v{T0+5}
    v_lshl_add_u32 v{T0+5}, v{T0+4}, 3, v{T0+5}   ; (g&1)*32 + c4*8
    v_lshl_add_u32 v{T0+6}, v{T0+2}, 3, v{T0+3}   ; 8hi + r
    v_lshl_add_u32 v{KA}, v{T0+6}, 6, v{T0+5}
    v_add_u32 v{KA}, {KVO}, v{KA}
    v_lshl_add_u32 v{T0+5}, v{T0+6}, 9, v{T0+5}   ; (8hi+r)*512 + ...
    s_lshl_b32 s7, s25, 8
    s_add_u32 s7, s7, {WO}
    v_add_u32 v{T0+5}, s7, v{T0+5}
    """)
    for tt in range(4):
        a(f"v_xor_b32 v{T0+4}, {tt}, v{T0+3}")
        a(f"v_lshl_add_u32 v{WA+tt}, v{T0+4}, 6, v{T0+5}")
    a(f"v_lshlrev_b32 v{LN}, 4, v{T0}")
    for i in range(128): a(f"v_mov_b32 v{ACC+i}, 0")
    for i in range(16): a(f"v_mov_b32 v{KACC+i}, 0")
    a(f"s_mov_b32 s26, 0\ns_mov_b32 s50, {-2*STG}\ns_mov_b32 s51, {STG}")
    a(f"""
    s_cmp_eq_u32 s4, 2
    s_cbranch_scc1 p1_c_V
    s_cmp_eq_u32 s4, 3
    s_cbranch_scc0 p1_c_QK
    s_lshl_b32 s7, s6, 1
    s_add_u32 s7, s7, s25
    """)
    for v in range(8):
        a(f"s_cmp_eq_u32 s7, {v}")
        a(f"s_cbranch_scc1 p1_c_B{v}")
    a("s_endpgm")

    def reads(st, s, useKV):
        x = lambda mi: f"ds_read_b128 {vr(xf(st,mi),4)}, v{XA+s} offset:{4096*mi}"
        w = lambda tt, h: f"ds_read_b64_tr_b16 {vr(wf(st,tt)+2*h,2)}, v{WA+tt} offset:{8192*s+2048*h}"
        g = [[x(0), w(0,0), w(0,1)], [w(1,0), w(1,1)], [x(1), w(2,0)], [w(2,1), w(3,0), w(3,1)], []]
        if useKV:
            g[4] = [f"ds_read_b64_tr_b16 {vr(kf(st)+2*h,2)}, v{KA} offset:{1024*s+256*h}" for h in range(2)]
        return g

    def body(var, last):
        kv = var.get("kv")
        for s in range(4):
            st = s & 1
            mf = []
            for mi in range(2):
                for tt in range(4):
                    A_, B_ = (wf(st,tt), xf(st,mi))
                    if var["vtype"]: A_, B_ = B_, A_
                    mf.append(f"v_mfma_f32_32x32x16_bf16 {vr(acc(mi,tt),16)}, {vr(A_,4)}, {vr(B_,4)}, {vr(acc(mi,tt),16)}")
            if kv and (s >> 1) == kv[1]:
                A_, B_ = (kf(st), xf(st, kv[2]))
                if kv[0]: A_, B_ = B_, A_
                mf.insert(5, f"v_mfma_f32_32x32x16_bf16 {vr(KACC,16)}, {vr(A_,4)}, {vr(B_,4)}, {vr(KACC,16)}")
            gaps = [[] for _ in mf]
            ns = (s + 1) & 3
            nkv = kv and ((ns >> 1) == kv[1])
            a("s_waitcnt lgkmcnt(0)")
            if s == 3:
                if last:
                    pass
                else:
                    a("s_barrier")
                    g = reads(st ^ 1, 0, nkv)
                    add = lambda r: f"v_add_u32 v{r}, s27, v{r}"
                    gaps[0] = [add(XA), add(WA)] + g[0]
                    gaps[1] = [add(WA+1)] + g[1]
                    gaps[2] = [add(WA+2)] + g[2]
                    gaps[3] = [add(WA+3)] + g[3]
                    gaps[4] = ([add(KA)] + g[4]) if kv else []
                    if kv and not nkv: gaps[4] = [add(KA)]
                    gaps[5] = [add(XA+1), add(XA+2)]
                    gaps[6] = [add(XA+3), "s_sub_u32 s28, s28, 1", "s_cmp_lg_u32 s28, 0"]
            else:
                g = reads(st ^ 1, ns, nkv)
                for k in range(5): gaps[k] = list(g[k])
                if s == 0 and not last:
                    gaps[5] += ["s_add_u32 s26, s26, 1", "s_cmp_eq_u32 s26, 3"]
                    gaps[6] += ["s_cselect_b32 s27, s50, s51", "s_cselect_b32 s26, 0, s26"]
                if s == 1 and not last and cpf:
                    gaps[5] += ["s_min_u32 s7, s49, s56", "s_add_u32 s49, s49, s48"]
                    gaps[6] += [f"buffer_load_dword v{TD}, v{TV}, s[52:55], s7 offen"]
            for m, g in zip(mf, gaps):
                a(m)
                for x in g: a(x)

    def epilogue(var):
        kv = var.get("kv")
        a("s_nop 7")
        a("s_nop 3")
        if cpf: a("s_waitcnt vmcnt(0)")
        if kv and kv[1] == 1:
            a(f"s_lshl_b32 s7, s24, 12")
            a(f"s_add_u32 s7, s7, {STG}")
            a(f"v_add_u32 v{T0}, s7, v{LN}")
            for j in range(4):
                a(f"ds_write_b128 v{T0}, {vr(KACC+4*j,4)} offset:{1024*j}")
        for mi in range(2):
            for tt in range(4):
                r = acc(mi, tt)
                if var["scale"]:
                    for j in range(8): a(f"v_pk_mul_f32 {vr(r+2*j,2)}, {vr(r+2*j,2)}, s[34:35]")
                for j in range(8): a(f"v_cvt_pk_bf16_f32 v{r+j}, v{r+2*j}, v{r+2*j+1}")
                a(f"s_mul_i32 s7, s31, {tt}")
                a(f"s_add_u32 s7, s7, s30")
                if mi: a(f"s_add_u32 s7, s7, s32")
                a(f"buffer_store_dwordx4 {vr(r,4)}, v{LN}, s[20:23], s7 offen{st_mod}")
                a(f"buffer_store_dwordx4 {vr(r+4,4)}, v{LN}, s[20:23], s7 offen offset:1024{st_mod}")
        if kv:
            a("s_waitcnt lgkmcnt(0)")
            a("s_barrier")
            if kv[1] == 0:
                a(f"s_lshl_b32 s7, s24, 12")
                a(f"s_add_u32 s7, s7, {STG}")
                a(f"v_add_u32 v{T0}, s7, v{LN}")
                for j in range(4):
                    a(f"ds_read_b128 {vr(XF+4*j,4)}, v{T0} offset:{1024*j}")
                a("s_waitcnt lgkmcnt(0)")
                for j in range(16): a(f"v_add_f32 v{KACC+j}, v{KACC+j}, v{XF+j}")
                for j in range(8): a(f"v_cvt_pk_bf16_f32 v{KACC+j}, v{KACC+2*j}, v{KACC+2*j+1}")
                a(f"""
                s_lshl_b32 s7, s5, 2
                s_lshl_b32 s33, s24, 1
                s_add_u32 s7, s7, s33
                s_add_u32 s7, s7, {kv[2]}
                s_lshl_b32 s7, s7, 12
                s_add_u32 s7, s7, {WS_KVB + 2048*kv[0]}
                buffer_store_dwordx4 {vr(KACC,4)}, v{LN}, s[20:23], s7 offen{st_mod}
                buffer_store_dwordx4 {vr(KACC+4,4)}, v{LN}, s[20:23], s7 offen offset:1024{st_mod}
                """)
        pr.flush(T0)
        a("s_endpgm")

    def variant(lbl, var):
        a.label(lbl)
        a(f"""
        s_lshl_b32 s7, s6, 3
        s_lshl_b32 s33, s25, 2
        s_add_u32 s7, s7, s33          ; head0
        s_lshl_b32 s33, s5, 2
        s_lshl_b32 s36, s24, 1
        s_add_u32 s33, s33, s36        ; tb0
        """)
        if var["out"] in ("QA", "QB"):
            base = WS_QA if var["out"] == "QA" else WS_QB
            a(f"s_mov_b32 s31, 131072\ns_mov_b32 s32, 2048\ns_mov_b32 s36, {base}")
        else:
            a(f"s_mov_b32 s31, 262144\ns_mov_b32 s32, 4096\ns_mov_b32 s36, {WS_KVA + (2048 if var['out']=='VA' else 0)}")
        if var["out"] == "QKA":
            a(f"""
            s_cmp_eq_u32 s4, 0
            s_cselect_b32 s31, 131072, s31
            s_cselect_b32 s32, 2048, s32
            s_cselect_b32 s36, {WS_QA}, s36
            s_cselect_b32 s34, {hex(QSCALE)}, 1.0
            s_mov_b32 s35, s34
            """)
        else:
            a(f"s_mov_b32 s34, {hex(QSCALE)}\ns_mov_b32 s35, s34")
        a(f"""
        s_mul_i32 s7, s7, s31
        s_mul_i32 s33, s33, s32
        s_add_u32 s30, s7, s33
        s_add_u32 s30, s30, s36
        s_mov_b32 s28, 15
        s_waitcnt lgkmcnt(0)
        s_barrier
        """)
        pr.at(2); pr.stamp()
        kv = var.get("kv")
        for g in reads(0, 0, kv and kv[1] == 0):
            for x in g: a(x)
        lp = lbl + "_loop"
        a(".p2align 6")
        a.label(lp)
        body(var, False)
        a(f"s_cbranch_scc1 {lp}")
        body(var, True)
        pr.stamp()
        epilogue(var)

    variant("p1_c_QK", dict(vtype=False, scale=True, out="QKA"))
    variant("p1_c_V", dict(vtype=True, scale=False, out="VA"))
    for v in range(8):
        nt, wn = v >> 1, v & 1
        variant(f"p1_c_B{v}", dict(vtype=False, scale=True, out="QB", kv=(nt & 1, wn, nt >> 1)))

    a.label("p1_loader")
    a(f"""
    s_sub_u32 s24, s3, 4
    s_and_b32 s25, s24, 1               ; parity
    v_lshrrev_b32 v4, 4, v0
    s_lshl_b32 s7, s25, 2
    v_add_u32 v4, s7, v4
    v_and_b32 v4, 7, v4                 ; swz
    v_and_b32 v5, 7, v0
    v_xor_b32 v4, v4, v5                ; chunk
    v_lshlrev_b32 v4, 4, v4
    v_lshrrev_b32 v5, 3, v0             ; tok_l
    v_lshl_add_u32 v1, v5, 11, v4
    s_lshl_b32 s7, s5, 7
    s_lshl_b32 s26, s24, 3
    s_add_u32 s7, s7, s26
    s_lshl_b32 s7, s7, 11
    v_add_u32 v1, s7, v1
    v_lshrrev_b32 v5, 5, v0             ; row_l
    s_lshl_b32 s7, s25, 1
    v_add_u32 v4, s7, v5
    v_and_b32 v4, 3, v4
    v_lshlrev_b32 v4, 2, v4
    v_and_b32 v6, 31, v0
    v_xor_b32 v4, v4, v6
    v_lshlrev_b32 v4, 4, v4             ; chunk*16
    s_lshl_b32 s26, s24, 1
    v_add_u32 v5, s26, v5
    v_lshlrev_b32 v3, 4, v0
    s_lshl_b32 s7, s24, 10
    v_add_u32 v3, s7, v3
    s_lshl_b32 s40, s24, 10             ; lw*1024
    """)
    pf = cfg.get("p1_pf", 0)
    if rot and not pf:
        a("s_lshl_b32 s41, s5, 1\ns_mul_i32 s7, s6, 5\ns_add_u32 s41, s41, s7\ns_and_b32 s41, s41, 15")
    elif rot == 2:
        a("s_xor_b32 s41, s5, s6\ns_and_b32 s41, s41, 1\ns_lshl_b32 s41, s41, 3")
    else:
        a("s_mov_b32 s41, 0")
    a("s_cmp_eq_u32 s4, 3\ns_cbranch_scc1 p1_loadB")
    def loader(isB):
        RS = 2048 if isB else 6144
        G = 13 if isB else 12
        a(f"v_mul_u32_u24 v5, {RS}, v5" if RS != 2048 else "v_lshlrev_b32 v5, 11, v5")
        a("v_add_u32 v2, v4, v5")
        if isB:
            a("s_lshl_b32 s7, s6, 9")
        else:
            a("s_lshl_b32 s7, s4, 11\ns_lshl_b32 s26, s6, 9\ns_add_u32 s7, s7, s26")
        a("v_add_u32 v2, s7, v2")
        a("s_mov_b32 s42, s40")
        if pf:
            a(f"""
            s_lshr_b32 s7, s2, 3               ; idx 0..31
            s_and_b32 s26, s2, 1
            s_lshl_b32 s26, s26, 10
            s_lshl_b32 s27, s7, 5
            s_add_u32 s26, s26, s27
            s_and_b32 s27, s24, 1
            s_lshl_b32 s28, s27, 4
            s_add_u32 s26, s26, s28
            s_lshl_b32 s26, s26, 11
            s_lshl_b32 s7, s7, 1
            s_add_u32 s7, s7, s27
            s_mul_i32 s7, s7, {RS}
            """)
            if not isB: a("s_lshl_b32 s27, s4, 11\ns_add_u32 s7, s7, s27")
            a(f"""
            v_lshrrev_b32 v6, 2, v0
            v_lshlrev_b32 v6, 11, v6
            v_and_b32 v7, 3, v0
            v_lshl_add_u32 v6, v7, 5, v6
            v_add_u32 v6, s26, v6
            v_lshlrev_b32 v7, 5, v0
            v_add_u32 v7, s7, v7
            s_mov_b32 s48, 128
            s_cmp_ge_u32 s24, 2
            s_cselect_b64 vcc, -1, 0
            s_cselect_b32 s48, {64*RS}, s48
            v_cndmask_b32 v6, v6, v7, vcc
            """)
        pr.at(2)
        a("s_waitcnt lgkmcnt(0)")
        steps = cfg.get("prof_steps")
        class NP:
            def stamp(self): pass
        pr0 = NP() if steps else pr
        pr0.stamp()
        if pf:
            a("""
            s_cmp_ge_u32 s24, 2
            s_cselect_b32 s52, s12, s8
            s_cselect_b32 s53, s13, s9
            s_cselect_b32 s54, s14, s10
            s_mov_b32 s55, 0x20000
            """)
        def ops():
            hd = [f"s_lshl_b32 s43, s41, 7", f"s_mul_i32 s44, s41, {64*RS}"]
            if isB: hd.append("s_lshl_b32 s46, s41, 12")
            seq = []
            for t in range(4): seq.append(("x", t))
            for t in range(8): seq.append(("w", t))
            order = [seq[0], seq[4], seq[5], seq[1], seq[6], seq[7], seq[2], seq[8], seq[9], seq[3], seq[10], seq[11]]
            g = []
            for k, t in order:
                if k == "x":
                    g.append([f"s_add_u32 m0, s42, {XO + 4096*t}", f"s_add_u32 s45, s43, {65536*t}", f"buffer_load_dwordx4 v1, s[8:11], s45 offen lds"])
                else:
                    g.append([f"s_add_u32 m0, s42, {WO + 4096*t}", f"s_add_u32 s45, s44, {8*RS*t}", f"buffer_load_dwordx4 v2, s[12:15], s45 offen lds"])
            if isB:
                g.append([f"s_add_u32 m0, s42, {KVO}", "s_nop 0", f"buffer_load_dwordx4 v3, s[16:19], s46 offen lds"])
            tl = ["s_add_u32 s41, s41, 1", "s_and_b32 s41, s41, 15", f"s_add_u32 s42, s42, {STG}", f"s_cmp_ge_u32 s42, {3*STG}", "s_cselect_b32 s42, s40, s42"]
            g[0] = hd + g[0]; g[-1] = g[-1] + tl
            return g
        def issue(lo=0, hi=None):
            for grp in ops()[lo:hi]:
                for x in grp: a(x)
        def touch(reg, sl=None):
            if sl is None:
                a("s_min_u32 s7, s49, 15\ns_mul_i32 s7, s7, s48\ns_add_u32 s49, s49, 1")
            else:
                a(f"s_mul_i32 s7, s48, {sl}")
            a(f"buffer_load_dword v{reg}, v6, s[52:55], s7 offen")
        lp = a.newlabel("p1_ld")
        if not pf:
            n0 = cfg.get("p1_n0", G)
            n0 = min(n0, G)
            issue(); pr0.stamp(); issue(0, n0); pr0.stamp()
            a(f"s_waitcnt vmcnt({n0})\ns_barrier")
            if steps: pr.stamp()
            if n0 < G: issue(n0, None)
            issue()
            if steps:
                for j in range(13):
                    a(f"s_waitcnt vmcnt({G})\ns_barrier")
                    pr.stamp()
                    issue()
            else:
                a("s_mov_b32 s47, 13")
                a.label(lp)
                a(f"s_waitcnt vmcnt({G})\ns_barrier")
                issue()
                a(f"s_sub_u32 s47, s47, 1\ns_cmp_lg_u32 s47, 0\ns_cbranch_scc1 {lp}")
            a(f"s_waitcnt vmcnt({G})\ns_barrier\ns_waitcnt vmcnt(0)\ns_barrier")
        else:
            n0 = min(cfg.get("p1_n0", 4), G)
            D = cfg.get("p1_pfd", 5)
            issue()
            ni = D - 3
            for k in range(ni): touch(10 + k, 2 + k)
            if isB and cfg.get("p1_pfkv", 1):
                a("""
                s_lshr_b32 s7, s2, 3
                s_lshr_b32 s26, s7, 4
                s_lshl_b32 s26, s26, 3
                s_and_b32 s7, s7, 7
                s_add_u32 s7, s7, s26
                s_lshl_b32 s7, s7, 12
                buffer_load_dword v9, v3, s[16:19], s7 offen
                """)
                ni += 1
            pr0.stamp()
            issue(0, n0); pr0.stamp()
            a(f"s_waitcnt vmcnt({n0 + ni})\ns_barrier")
            if steps: pr.stamp()
            if n0 < G: issue(n0, None)
            touch(20, D - 1)
            issue()
            a(f"s_mov_b32 s49, {D}")
            touch(21)
            if steps:
                for j in range(13):
                    a(f"s_waitcnt vmcnt({G+2})\ns_barrier")
                    pr.stamp()
                    issue()
                    touch(22)
            else:
                a("s_mov_b32 s47, 13")
                a.label(lp)
                a(f"s_waitcnt vmcnt({G+2})\ns_barrier")
                issue()
                touch(22)
                a(f"s_sub_u32 s47, s47, 1\ns_cmp_lg_u32 s47, 0\ns_cbranch_scc1 {lp}")
            a(f"s_waitcnt vmcnt({G+2})\ns_barrier\ns_waitcnt vmcnt(0)\ns_barrier")
        if steps: pr.n = 14
        pr.flush(8)
        a("s_endpgm")
    loader(False)
    a.label("p1_loadB")
    loader(True)
    a.label("p1_exit")
    a("s_endpgm")
    return a.text(), descriptor(NAME, 256, 256), 3 * STG

if __name__ == "__main__":
    t, d, lds = gen_p1({})
    print(len(t.split("\n")), "lines; lds", lds)
    check(t)
```

```python
from asmlib import *
from common import *

NAME = "p2_kernel"
AREG = 0
RING = 65536
NSLOT = 4
S = [0, 16]; P = [32, 40]; O = [48, 64]; L = [80, 84]
QB_ = [88, 96]
KB = [104, 120]
VB = [112, 128]
ONES = 136
MD = 140; M1 = 156
QA_ = [172, 180]
LN = 188
RB = 189
AB = 190
T0 = 192
NINF = "0xff800000"

class VmTrack:
    def __init__(self): self.ops = []
    def issue(self, tag, n=1): self.ops += [tag] * n
    def need(self, tag):
        last = max(i for i, t in enumerate(self.ops) if t == tag)
        return len(self.ops) - 1 - last

def gen_p2(cfg):
    st_mod = cfg.get("p2_store", "")
    a = Asm()
    pr = Prof(a, cfg.get("prof"), 1, 8)
    a(khead(NAME))
    pr.stamp()
    a(f"""
    s_cmp_ge_u32 s2, 256
    s_cbranch_scc1 p2_exit
    s_load_dwordx2 s[8:9], s[0:1], {KA_WS}
    v_lshrrev_b32 v1, 6, v0
    v_and_b32 v0, 63, v0
    s_and_b32 s7, s2, 7
    v_readfirstlane_b32 s3, v1
    s_lshr_b32 s5, s2, 3
    s_and_b32 s4, s5, 3
    s_lshl_b32 s7, s7, 2
    s_add_u32 s4, s4, s7              ; h
    s_lshr_b32 s5, s5, 2              ; qb
    s_mov_b32 s10, {hex(WS_SIZE)}
    s_mov_b32 s11, 0x20000
    v_lshlrev_b32 v{LN}, 4, v0
    s_cmp_ge_u32 s3, 4
    s_cbranch_scc1 p2_loader
    v_mov_b32 v{T0}, v0
    s_lshl_b32 s12, s5, 3
    s_lshl_b32 s7, s3, 1
    s_add_u32 s12, s12, s7
    s_lshl_b32 s13, s4, 17            ; h*131072
    s_lshl_b32 s7, s12, 11
    s_add_u32 s13, s13, s7
    s_add_u32 s14, s13, {WS_QB}
    s_add_u32 s15, s13, {WS_QA}
    s_mov_b32 s18, {WS_KVB}
    s_waitcnt lgkmcnt(0)
    """)
    for k in range(2):
        a(f"buffer_load_dwordx4 {vr(QB_[0]+4*k,4)}, v{LN}, s[8:11], s14 offen offset:{1024*k}")
    for k in range(2):
        a(f"buffer_load_dwordx4 {vr(KB[1]+4*k,4)}, v{LN}, s[8:11], s18 offen offset:{1024*k}")
    for k in range(2):
        a(f"buffer_load_dwordx4 {vr(QB_[1]+4*k,4)}, v{LN}, s[8:11], s14 offen offset:{2048+1024*k}")
    for k in range(4):
        a(f"buffer_load_dwordx4 {vr(QA_[0]+4*k,4)}, v{LN}, s[8:11], s15 offen offset:{1024*k}")
    a(f"""
    v_add_u32 v{RB}, {RING}, v{LN}
    s_lshl_b32 s7, s3, 13
    s_add_u32 s7, s7, {AREG}
    v_add_u32 v{AB}, s7, v{LN}
    v_and_b32 v{T0+1}, 15, v{T0}        ; m
    v_lshrrev_b32 v{T0+2}, 4, v{T0}
    v_and_b32 v{T0+2}, 1, v{T0+2}       ; (l>>4)&1
    v_lshlrev_b32 v{T0+2}, 2, v{T0+2}
    v_and_b32 v{T0+3}, 7, v{T0+1}
    v_cmp_eq_u32 vcc, v{T0+2}, v{T0+3}
    v_mov_b32 v{T0+4}, 0x3f803f80
    v_and_b32 v{T0+5}, 31, v{T0}        ; q
    v_cndmask_b32 v{ONES}, 0, v{T0+4}, vcc
    v_lshrrev_b32 v{T0+6}, 5, v{T0}
    v_lshlrev_b32 v{T0+6}, 2, v{T0+6}   ; 4*hi
    v_sub_u32 v{T0+5}, v{T0+5}, v{T0+6} ; q - 4hi
    v_mov_b32 v{ONES+1}, v{ONES}
    v_mov_b32 v{ONES+2}, v{ONES}
    v_mov_b32 v{ONES+3}, v{ONES}
    v_mov_b32 v{T0+4}, {NINF}
    """)
    for r in range(0, 16, 2):
        for rr, sp in ((r, "s[24:25]"), (r + 1, "s[26:27]")):
            c = 8 * (rr >> 2) + (rr & 3)
            a(f"v_cmp_le_i32 {sp}, {c}, v{T0+5}")
        a("s_nop 0")
        for rr, sp in ((r, "s[24:25]"), (r + 1, "s[26:27]")):
            a(f"v_cndmask_b32 v{MD+rr}, v{T0+4}, 0, {sp}")
            a(f"v_cndmask_b32 v{M1+rr}, 0, v{T0+4}, {sp}")
    def zero_acc():
        for sl in range(2):
            for r in range(16): a(f"v_mov_b32 v{O[sl]+r}, 0")
            for r in range(4): a(f"v_mov_b32 v{L[sl]+r}, 0")
    zero_acc()

    def mf_S(slot, Q, K, C):
        return [f"v_mfma_f32_32x32x16_bf16 {vr(S[slot],16)}, {vr(K,4)}, {vr(Q,4)}, {C}",
                f"v_mfma_f32_32x32x16_bf16 {vr(S[slot],16)}, {vr(K+4,4)}, {vr(Q+4,4)}, {vr(S[slot],16)}"]
    def mf_PV(slot, V):
        return [f"v_mfma_f32_32x32x16_bf16 {vr(O[slot],16)}, {vr(V,4)}, {vr(P[slot],4)}, {vr(O[slot],16)}",
                f"v_mfma_f32_16x16x32_bf16 {vr(L[slot],4)}, {vr(ONES,4)}, {vr(P[slot],4)}, {vr(L[slot],4)}",
                f"v_mfma_f32_32x32x16_bf16 {vr(O[slot],16)}, {vr(V+4,4)}, {vr(P[slot]+4,4)}, {vr(O[slot],16)}",
                f"v_mfma_f32_16x16x32_bf16 {vr(L[slot],4)}, {vr(ONES,4)}, {vr(P[slot]+4,4)}, {vr(L[slot],4)}"]
    def softmax(slot):
        s_, p_ = S[slot], P[slot]
        v = []
        for i in range(8):
            v.append(f"v_exp_f32 v{s_+2*i}, v{s_+2*i}")
            v.append(f"v_exp_f32 v{s_+2*i+1}, v{s_+2*i+1}")
            if i > 0: v.append(f"v_cvt_pk_bf16_f32 v{p_+i-1}, v{s_+2*i-2}, v{s_+2*i-1}")
        v.append(f"v_cvt_pk_bf16_f32 v{p_+7}, v{s_+14}, v{s_+15}")
        return v
    POS6 = cfg.get("p2_pos6", [0, 4, 8, 12, 16, 20])
    def phase(slot, smf, pvmf, extra=(), pre=()):
        for x in pre: a(x)
        v = softmax(slot)
        m = []
        if smf and pvmf: m = [smf[0], pvmf[0], pvmf[1], smf[1], pvmf[2], pvmf[3]]
        elif smf: m = [smf[0], smf[1]]
        elif pvmf: m = list(pvmf)
        nv = len(v)
        if len(m) == 6: pos = POS6
        elif len(m) == 4: pos = [4, 8, 14, 18]
        elif len(m) == 2: pos = [0, 8]
        else: pos = []
        out = []
        ex = list(extra)
        for i in range(nv + 1):
            for k, p in enumerate(pos):
                if p == i:
                    out.append(m[k])
                    if ex: out.append(ex.pop(0))
            if i < nv: out.append(v[i])
        out += ex
        for x in out: a(x)

    def rd_set(buf, addr, offK, offV):
        return [f"ds_read_b128 {vr(KB[buf],4)}, v{addr} offset:{offK}",
                f"ds_read_b128 {vr(VB[buf],4)}, v{addr} offset:{offV}",
                f"ds_read_b128 {vr(KB[buf]+4,4)}, v{addr} offset:{offK+1024}",
                f"ds_read_b128 {vr(VB[buf]+4,4)}, v{addr} offset:{offV+1024}"]

    a("s_waitcnt vmcnt(4)\ns_barrier")
    pr.stamp()
    for x in rd_set(0, RB, 2048, 0): a(x)
    for x in mf_S(0, QB_[0], KB[1], "0"): a(x)
    a("s_nop 7\ns_nop 3")
    phase(0, mf_S(1, QB_[1], KB[1], "0"), [])
    a(f"s_mov_b32 s20, 0\ns_mov_b32 s21, 15\ns_mov_b32 s37, {-16384*(NSLOT-1)}\ns_mov_b32 s38, 16384")
    def bbody(kind):
        for jj in range(4):
            buf = jj & 1
            pre = ["s_waitcnt lgkmcnt(0)"]
            lastt = kind == "last" and jj == 3
            if jj == 2 and kind != "last":
                pass
            if jj == 3:
                pre += ["s_barrier"]
                if kind != "last":
                    pre += [f"v_add_u32 v{RB}, s22, v{RB}"]
                    extra = rd_set(buf ^ 1, RB, 2048, 0)
                else:
                    extra = rd_set(0, AB, 8 * 4096, 9 * 4096 + 2048)
                    extra += [f"ds_read_b128 {vr(KB[1],4)}, v{AB} offset:{9*4096}", f"ds_read_b128 {vr(KB[1]+4,4)}, v{AB} offset:{9*4096+1024}"]
            else:
                extra = rd_set(buf ^ 1, RB, (jj + 1) * 4096 + 2048, (jj + 1) * 4096)
            phase(1, [] if lastt else mf_S(0, QB_[0], KB[buf], "0"), mf_PV(0, VB[buf]), extra=extra, pre=pre)
            if lastt: break
            extra = []
            if jj == 1 and kind == "loop":
                extra = ["s_add_u32 s20, s20, 1", f"s_cmp_eq_u32 s20, {NSLOT}", "s_cselect_b32 s22, s37, s38", "s_cselect_b32 s20, 0, s20"]
            if jj == 3 and kind == "loop": extra = ["s_sub_u32 s21, s21, 1", "s_cmp_lg_u32 s21, 0"]
            phase(0, mf_S(1, QB_[1], KB[buf], "0"), mf_PV(1, VB[buf]), extra=extra)
    a(".p2align 6")
    a.label("p2_bloop")
    bbody("loop")
    a("s_cbranch_scc1 p2_bloop")
    bbody("last")
    a("s_nop 1")
    for x in mf_PV(1, VB[1]): a(x)
    pr.stamp()

    def finish(part):
        slow = f"p2_slow{part}"; back = f"p2_back{part}"
        a("s_nop 7\ns_nop 7")
        for k in (0, 1, 4, 5): a(f"v_mov_b32 v{T0+k}, 0")
        for sl in range(2):
            for j in range(8):
                a(f"v_pk_fma_f32 {vr(T0,2)}, {vr(O[sl]+2*j,2)}, {vr(T0+4,2)}, {vr(T0,2)}")
        a(f"v_add_f32 v{T0}, v{T0}, v{T0+1}")
        a(f"v_mov_b32 v{T0+2}, 0x21800000      ; 2^-60")
        a(f"v_mov_b32 v{T0+3}, 0x5d800000      ; 2^60")
        a(f"v_cmp_eq_f32 s[24:25], 0, v{T0}")
        for sl in range(2):
            a(f"v_cmp_gt_f32 s[26:27], v{L[sl]}, v{T0+2}")
            a(f"v_cmp_lt_f32 s[28:29], v{L[sl]}, v{T0+3}")
            a("s_and_b64 s[24:25], s[24:25], s[26:27]")
            a("s_and_b64 s[24:25], s[24:25], s[28:29]")
        if cfg.get("force_slow"):
            a("s_mov_b64 s[24:25], 0")
        a("s_cmp_eq_u64 s[24:25], -1")
        a(f"s_cbranch_scc0 {slow}")
        a.label(back)
        base = WS_OB if part == "B" else WS_OA
        a(f"""
        s_lshl_b32 s7, s12, 16
        s_lshl_b32 s19, s4, 11
        s_add_u32 s7, s7, s19
        s_add_u32 s7, s7, {base}
        v_rcp_f32 v{T0}, v{L[0]}
        v_rcp_f32 v{T0+2}, v{L[1]}
        s_nop 0
        v_mov_b32 v{T0+1}, v{T0}
        v_mov_b32 v{T0+3}, v{T0+2}
        """)
        for sl in range(2):
            o = O[sl]
            for j in range(8): a(f"v_pk_mul_f32 {vr(o+2*j,2)}, {vr(o+2*j,2)}, {vr(T0+2*sl,2)}")
            for j in range(8): a(f"v_cvt_pk_bf16_f32 v{o+j}, v{o+2*j}, v{o+2*j+1}")
            if sl: a("s_add_u32 s7, s7, 65536")
            a(f"buffer_store_dwordx4 {vr(o,4)}, v{LN}, s[8:11], s7 offen{st_mod}")
            a(f"buffer_store_dwordx4 {vr(o+4,4)}, v{LN}, s[8:11], s7 offen offset:1024{st_mod}")
    finish("B")
    pr.stamp()

    a("s_nop 1")
    zero_acc()
    a(f"""
    s_lshl_b32 s30, s3, 1
    s_cmp_eq_u32 s5, 0
    s_cselect_b32 s30, s30, -1          ; exit j
    s_waitcnt vmcnt(4) lgkmcnt(0)
    """)
    items = [(1, 1, vr(MD,16)), (0, 0, vr(MD,16)), (1, 0, "0")]
    for j in range(1, 7): items += [(0, -j, "0"), (1, -j, "0")]
    items += [(0, -7, "0"), (1, -7, vr(M1,16)), (0, -8, vr(M1,16))]
    assert len(items) == 18
    offK = lambda j: (8 + j) * 4096
    offV = lambda j: (8 + j) * 4096 + 2048
    for x in mf_S(1, QA_[1], KB[1], items[0][2]): a(x)
    a("s_nop 7\ns_nop 3")
    for n in range(18):
        slot = items[n][0]
        setj = n >> 1
        buf = setj & 1
        pre = []; extra = []
        if n % 2 == 0:
            if n > 0: pre = ["s_waitcnt lgkmcnt(0)"]
            nj = setj + 1
            if nj <= 8: extra = rd_set(buf ^ 1, AB, offK(-nj), offV(-nj + 1))
            elif nj == 9: extra = [f"ds_read_b128 {vr(VB[buf^1]+4*k,4)}, v{AB} offset:{offV(-8)+1024*k}" for k in range(2)]
        smf = []
        if n + 1 < 18:
            nslot, nk, nC = items[n + 1]
            smf = mf_S(nslot, QA_[nslot], KB[buf], nC)
        pv = mf_PV(items[n - 1][0], VB[buf]) if n >= 1 else []
        phase(slot, smf, pv, extra=extra, pre=pre)
        if n in (2, 6, 10, 14):
            a(f"s_cmp_eq_u32 s30, {(n-2)//2}")
            a("s_cbranch_scc1 p2_drainB")
    a("s_waitcnt lgkmcnt(0)")
    for x in mf_PV(0, VB[1]): a(x)
    a("s_branch p2_adone")
    a.label("p2_drainB")
    a("s_waitcnt lgkmcnt(0)")
    for x in mf_PV(1, VB[1]): a(x)
    a.label("p2_adone")
    pr.stamp()
    finish("A")
    pr.flush(T0)
    a("s_endpgm")

    def slow(part):
        a.label(f"p2_slow{part}")
        Q = QB_ if part == "B" else QA_
        CB = T0 + 16
        K_, V_ = 224, 232
        if part == "B": a("s_waitcnt vmcnt(0)")
        for sl in range(2):
            a(f"s_add_u32 s35, s12, {sl}")
            if part == "B":
                a(f"s_mov_b32 s32, 0\ns_mov_b32 s33, 63\ns_mov_b32 s34, {WS_KVB}")
            else:
                a(f"s_sub_u32 s32, s35, 8\ns_max_i32 s32, s32, 0\ns_mov_b32 s33, s35\ns_lshl_b32 s34, s4, 18\ns_add_u32 s34, s34, {WS_KVA}")
            a(f"""
            v_lshrrev_b32 v{T0+5}, 4, v{LN}        ; lane
            v_and_b32 v{T0+4}, 31, v{T0+5}
            v_lshrrev_b32 v{T0+5}, 5, v{T0+5}
            v_lshlrev_b32 v{T0+5}, 2, v{T0+5}
            v_sub_u32 v{T0+4}, v{T0+4}, v{T0+5}
            s_lshl_b32 s7, s35, 5
            v_add_u32 v{T0+4}, s7, v{T0+4}
            v_mov_b32 v{T0+6}, {NINF}
            v_mov_b32 v{T0+7}, {NINF}
            """)
            def cblock(val):
                if part == "B":
                    for r in range(16): a(f"v_mov_b32 v{CB+r}, {val}")
                else:
                    a("s_lshl_b32 s7, s36, 5")
                    a(f"v_subrev_u32 v{T0+5}, s7, v{T0+4}")
                    for r in range(16):
                        c = 8 * (r >> 2) + (r & 3)
                        a(f"v_subrev_u32 v{T0+9}, {c}, v{T0+5}")
                        a(f"v_cmp_gt_u32 vcc, 0x100, v{T0+9}")
                        a("s_nop 1")
                        a(f"v_cndmask_b32 v{CB+r}, v{T0+7}, {val}, vcc")
            def loadK(withV):
                a("s_lshl_b32 s7, s36, 12\ns_add_u32 s7, s7, s34")
                for k in range(2): a(f"buffer_load_dwordx4 {vr(K_+4*k,4)}, v{LN}, s[8:11], s7 offen offset:{1024*k}")
                if withV:
                    for k in range(2): a(f"buffer_load_dwordx4 {vr(V_+4*k,4)}, v{LN}, s[8:11], s7 offen offset:{2048+1024*k}")
            l1 = a.newlabel("p2_s1"); l2 = a.newlabel("p2_s2")
            a("s_mov_b32 s36, s32")
            a.label(l1)
            loadK(False)
            cblock("0")
            a("s_waitcnt vmcnt(0)\ns_nop 1")
            for x in mf_S(sl, Q[sl], K_, vr(CB, 16)): a(x)
            a("s_nop 7\ns_nop 7")
            for r in range(0, 16, 2): a(f"v_max3_f32 v{T0+6}, v{S[sl]+r}, v{S[sl]+r+1}, v{T0+6}")
            a(f"s_add_u32 s36, s36, 1\ns_cmp_le_u32 s36, s33\ns_cbranch_scc1 {l1}")
            a(f"""
            v_mov_b32 v{T0+8}, v{T0+6}
            s_nop 1
            v_permlane32_swap_b32 v{T0+6}, v{T0+8}
            s_nop 1
            v_max_f32 v{T0+6}, v{T0+6}, v{T0+8}
            v_sub_f32 v{T0+6}, 0, v{T0+6}          ; -max
            """)
            for r in range(16): a(f"v_mov_b32 v{O[sl]+r}, 0")
            for r in range(4): a(f"v_mov_b32 v{L[sl]+r}, 0")
            a("s_mov_b32 s36, s32")
            a.label(l2)
            loadK(True)
            cblock(f"v{T0+6}")
            a("s_waitcnt vmcnt(0)\ns_nop 1")
            for x in mf_S(sl, Q[sl], K_, vr(CB, 16)): a(x)
            a("s_nop 7\ns_nop 7")
            for x in softmax(sl): a(x)
            a("s_nop 1")
            for x in mf_PV(sl, V_): a(x)
            a(f"s_nop 7\ns_nop 7\ns_add_u32 s36, s36, 1\ns_cmp_le_u32 s36, s33\ns_cbranch_scc1 {l2}")
        a("s_nop 7\ns_nop 7")
        a(f"s_branch p2_back{part}")
    slow("B"); slow("A")

    a.label("p2_loader")
    a(f"""
    s_sub_u32 s3, s3, 4
    s_lshl_b32 s15, s3, 12                ; lw*4096
    s_add_u32 s16, s15, {WS_KVB + 2048}
    s_add_u32 s17, s15, {RING}
    s_lshl_b32 s7, s5, 3
    s_lshl_b32 s19, s3, 2
    s_add_u32 s7, s7, s19
    s_sub_u32 s7, s7, 8
    s_max_i32 s7, s7, 0
    s_lshl_b32 s7, s7, 12
    s_lshl_b32 s19, s4, 18
    s_add_u32 s7, s7, s19
    s_add_u32 s20, s7, {WS_KVA}
    s_lshl_b32 s21, s3, 14                ; A dest
    """)
    pf = cfg.get("wo_prefetch", 1)
    if pf:
        a(f"""
        s_bitcmp1_b32 s2, 2
        s_cbranch_scc1 p2_woB
        s_load_dwordx2 s[12:13], s[0:1], {KA_AWO}
        s_branch p2_woj
p2_woB:
        s_load_dwordx2 s[12:13], s[0:1], {KA_BWO}
p2_woj:
        s_mov_b32 s14, {hex(2*MB)}
        s_mov_b32 s15, 0x20000
        s_lshr_b32 s7, s2, 3
        s_lshl_b32 s7, s7, 16
        s_lshl_b32 s19, s3, 14
        s_add_u32 s22, s7, s19
        v_lshlrev_b32 v1, 7, v0           ; lane*128
        """)
    pr.at(2)
    a("s_waitcnt lgkmcnt(0)")
    pr.stamp()
    vt = VmTrack()
    def chunk(c):
        a(f"s_add_u32 m0, s17, {16384*(c % NSLOT)}")
        a(f"s_add_u32 s19, s16, {16384*c}")
        for t in range(4): a(f"buffer_load_dwordx4 v{LN}, s[8:11], s19 offen offset:{1024*t} lds")
        vt.issue(f"c{c}", 4)
    def aload():
        for t in range(4):
            a(f"s_add_u32 m0, s21, {AREG + 4096*t}")
            a(f"s_add_u32 s19, s20, {4096*t}")
            for k in range(4): a(f"buffer_load_dwordx4 v{LN}, s[8:11], s19 offen offset:{1024*k} lds")
        vt.issue("A", 16)
    def touch(k):
        a(f"s_add_u32 s19, s22, {8192*k}")
        a(f"buffer_load_dword v{2+k}, v1, s[12:15], s19 offen")
        vt.issue("pf", 1)
    D = NSLOT - 1
    chunk(0)
    chunk(1)
    pr.stamp()
    a(f"s_waitcnt vmcnt({vt.need('c0')})")
    pr.stamp()
    a("s_barrier")
    for c in range(2, D + 1): chunk(c)
    aload()
    for c in range(16):
        tag = f"c{c+1}" if c < 15 else "A"
        a(f"s_waitcnt vmcnt({vt.need(tag)})\ns_barrier")
        if c + D + 1 <= 15 + 0 and c + D + 1 > D: chunk(c + D + 1) if c + D + 1 <= 15 else None
        if pf and c in (5, 9): touch(0 if c == 5 else 1)
    a("s_waitcnt vmcnt(0)")
    if cfg.get("prof"): a("s_add_u32 s3, s3, 4")
    pr.flush(8)
    a("s_endpgm")
    a.label("p2_exit")
    a("s_endpgm")
    return a.text(), descriptor(NAME, 256, 256), RING + 16384 * NSLOT

if __name__ == "__main__":
    t, d, lds = gen_p2({})
    print(len(t.split("\n")), "lines; lds", lds)
    check(t)
```

```python
from asmlib import *
from common import *

STG = 32768
NST = 4
OO, WO = 0, 16384
NAME = "concat_heads__sliding_block__grouped_kv_mqa__prompt_kernel"

def gen_p3(cfg, name=NAME):
    st_mod = cfg.get("p3_store", "")
    a = Asm()
    pr = Prof(a, cfg.get("prof"), 2, 8)
    a(khead(name))
    pr.stamp(True); pr.stamp()
    a(f"""
    s_cmp_ge_u32 s2, 256
    s_cbranch_scc1 p3_exit
    v_lshrrev_b32 v1, 6, v0
    v_and_b32 v0, 63, v0
    s_and_b32 s7, s2, 7
    v_readfirstlane_b32 s3, v1
    s_lshr_b32 s4, s7, 2
    s_and_b32 s7, s7, 3
    s_lshl_b32 s7, s7, 2
    s_lshr_b32 s6, s2, 3
    s_and_b32 s5, s6, 3
    s_add_u32 s5, s5, s7
    s_lshr_b32 s6, s6, 2
    s_load_dwordx2 s[8:9], s[0:1], {KA_WS}
    s_load_dwordx2 s[20:21], s[0:1], {KA_OUT}
    s_cmp_eq_u32 s4, 1
    s_cbranch_scc1 p3_isB
    s_load_dwordx2 s[12:13], s[0:1], {KA_AWO}
    s_branch p3_ptrs
p3_isB:
    s_load_dwordx2 s[12:13], s[0:1], {KA_BWO}
p3_ptrs:
    s_mov_b32 s10, {hex(WS_SIZE)}
    s_mov_b32 s11, 0x20000
    s_mov_b32 s14, {hex(2*MB)}
    s_mov_b32 s15, 0x20000
    s_mov_b32 s22, {hex(8*MB)}
    s_mov_b32 s23, 0x20000
    s_cmp_ge_u32 s3, 4
    s_cbranch_scc1 p3_loader
    """)
    ACC = 0
    OF = 64
    WF = 80
    OA_ = 96; WA = 97
    T0 = 100
    of = lambda st, mi: OF + 8 * st + 4 * mi
    wf = lambda st, tt: WF + 8 * st + 4 * tt
    acc = lambda mi, tt: ACC + 16 * (2 * mi + tt)
    a(f"""
    s_lshr_b32 s24, s3, 1               ; wm
    s_and_b32 s25, s3, 1                ; wn
    v_mov_b32 v99, v0
    v_lshlrev_b32 v{OA_}, 4, v0
    s_lshl_b32 s7, s24, 13
    v_add_u32 v{OA_}, s7, v{OA_}
    v_lshrrev_b32 v{T0}, 5, v0          ; hi
    v_lshrrev_b32 v{T0+1}, 2, v0
    v_and_b32 v{T0+1}, 3, v{T0+1}       ; r
    v_and_b32 v{T0+2}, 3, v0            ; c4
    v_lshrrev_b32 v{T0+3}, 4, v0
    v_and_b32 v{T0+3}, 1, v{T0+3}
    v_lshlrev_b32 v{T0+3}, 5, v{T0+3}
    v_lshl_add_u32 v{T0+3}, v{T0+2}, 3, v{T0+3}    ; (g&1)*32 + c4*8
    v_lshl_add_u32 v{T0+4}, v{T0}, 2, v{T0+1}      ; 4hi + r
    v_lshl_add_u32 v{T0+3}, v{T0+4}, 8, v{T0+3}
    v_add_u32 v{T0+3}, {WO}, v{T0+3}
    s_lshl_b32 s7, s25, 1
    """)
    for tt in range(2):
        a(f"s_add_u32 s26, s7, {tt}")
        a(f"v_xor_b32 v{T0+4}, s26, v{T0+1}")
        a(f"v_lshl_add_u32 v{WA+tt}, v{T0+4}, 6, v{T0+3}")
    for i in range(64): a(f"v_mov_b32 v{ACC+i}, 0")
    a(f"s_mov_b32 s26, 0\ns_mov_b32 s28, 15\ns_mov_b32 s50, {-(NST-1)*STG}\ns_mov_b32 s51, {STG}")

    def reads(st, s):
        o = lambda mi: f"ds_read_b128 {vr(of(st,mi),4)}, v{OA_} offset:{4096*mi + 1024*s}"
        w = lambda tt, h: f"ds_read_b64_tr_b16 {vr(wf(st,tt)+2*h,2)}, v{WA+tt} offset:{4096*s+2048*h}"
        return [[o(0), w(0,0), w(0,1)], [w(1,0), w(1,1), o(1)], [], []]
    def body(last):
        for s in range(4):
            st = s & 1
            mf = []
            for mi in range(2):
                for tt in range(2):
                    mf.append(f"v_mfma_f32_32x32x16_bf16 {vr(acc(mi,tt),16)}, {vr(wf(st,tt),4)}, {vr(of(st,mi),4)}, {vr(acc(mi,tt),16)}")
            gaps = [[] for _ in mf]
            a("s_waitcnt lgkmcnt(0)")
            if s == 3:
                if not last:
                    a("s_barrier")
                    g = reads(st ^ 1, 0)
                    add = lambda r: f"v_add_u32 v{r}, s27, v{r}"
                    gaps[0] = [add(OA_), add(WA)] + g[0]
                    gaps[1] = [add(WA+1)] + g[1]
                    gaps[2] = ["s_sub_u32 s28, s28, 1", "s_cmp_lg_u32 s28, 0"]
            else:
                g = reads(st ^ 1, s + 1)
                gaps[0] = g[0]; gaps[1] = g[1]
                if s == 0 and not last:
                    gaps[2] = ["s_add_u32 s26, s26, 1", f"s_cmp_eq_u32 s26, {NST}"]
                    gaps[3] = ["s_cselect_b32 s27, s50, s51", "s_cselect_b32 s26, 0, s26"]
            for m, g in zip(mf, gaps):
                a(m)
                for x in g: a(x)
    a("s_waitcnt lgkmcnt(0)\ns_barrier")
    pr.stamp()
    for g in reads(0, 0):
        for x in g: a(x)
    a(".p2align 6")
    a.label("p3_loop")
    body(False)
    a("s_cbranch_scc1 p3_loop")
    body(True)
    pr.stamp()
    a(f"""
    s_nop 7
    s_nop 3
    v_and_b32 v{T0}, 31, v99              ; tok (l&31)
    v_lshrrev_b32 v{T0+1}, 5, v99         ; hi
    v_and_b32 v{T0+2}, 7, v99             ; tok&7
    v_lshlrev_b32 v{T0+3}, 7, v{T0}      ; tok*128
    v_lshl_add_u32 v{T0+3}, v{T0+1}, 3, v{T0+3}
    s_lshl_b32 s7, s3, 13
    v_add_u32 v{T0+3}, s7, v{T0+3}
    """)
    for u in range(8):
        a(f"v_xor_b32 v{T0+4}, {u}, v{T0+2}")
        a(f"v_lshl_add_u32 v{T0+8+u}, v{T0+4}, 4, v{T0+3}")
    for mi in range(2):
        for tt in range(2):
            r = acc(mi, tt)
            for j in range(8): a(f"v_cvt_pk_bf16_f32 v{r+j}, v{r+2*j}, v{r+2*j+1}")
            for q in range(4):
                a(f"ds_write_b64 v{T0+8+4*tt+q}, {vr(r+2*q,2)} offset:{4096*mi}")
    a(f"""
    v_lshrrev_b32 v{T0}, 3, v99           ; row
    v_and_b32 v{T0+1}, 7, v99
    v_xor_b32 v{T0+2}, v{T0}, v{T0+1}
    v_and_b32 v{T0+2}, 7, v{T0+2}
    v_lshlrev_b32 v{T0+2}, 4, v{T0+2}
    v_lshl_add_u32 v{T0+2}, v{T0}, 7, v{T0+2}
    s_lshl_b32 s7, s3, 13
    v_add_u32 v{T0+2}, s7, v{T0+2}
    v_lshlrev_b32 v{T0+3}, 12, v{T0}
    v_lshl_add_u32 v{T0+3}, v{T0+1}, 4, v{T0+3}
    s_lshl_b32 s7, s5, 7
    s_lshl_b32 s26, s24, 6
    s_add_u32 s7, s7, s26
    s_lshl_b32 s7, s7, 12                ; token0*4096
    s_lshl_b32 s26, s4, 11
    s_add_u32 s7, s7, s26
    s_lshl_b32 s26, s6, 8
    s_add_u32 s7, s7, s26
    s_lshl_b32 s26, s25, 7
    s_add_u32 s7, s7, s26
    s_waitcnt lgkmcnt(0)
    """)
    for j in range(8):
        a(f"ds_read_b128 {vr(4*j,4)}, v{T0+2} offset:{1024*j}")
    for j in range(8):
        a(f"s_waitcnt lgkmcnt({7-j})")
        a(f"buffer_store_dwordx4 {vr(4*j,4)}, v{T0+3}, s[20:23], s7 offen{st_mod}")
        if j < 7: a(f"s_add_u32 s7, s7, {8*4096}")
    pr.flush(T0)
    a("s_endpgm")

    a.label("p3_loader")
    a(f"""
    s_sub_u32 s24, s3, 4                 ; lw
    v_lshlrev_b32 v1, 4, v0
    s_lshl_b32 s7, s5, 2
    s_add_u32 s7, s7, s24
    s_lshl_b32 s7, s7, 16                ; tb*65536
    s_cmp_eq_u32 s4, 1
    s_mov_b32 s26, {WS_OA}
    s_cselect_b32 s26, {WS_OB}, s26
    s_add_u32 s7, s7, s26
    v_add_u32 v1, s7, v1
    v_lshrrev_b32 v5, 4, v0              ; row_l
    v_lshlrev_b32 v4, 2, v5
    v_and_b32 v6, 15, v0
    v_xor_b32 v4, v4, v6
    v_lshlrev_b32 v4, 4, v4
    s_lshl_b32 s7, s24, 2
    v_add_u32 v5, s7, v5
    v_lshl_add_u32 v2, v5, 11, v4
    s_lshl_b32 s7, s6, 8
    v_add_u32 v2, s7, v2
    s_lshl_b32 s40, s24, 12
    s_lshl_b32 s39, s24, 10
    s_mov_b32 s42, 0
    """)
    if cfg.get("p3_rot", 0):
        a("s_lshl_b32 s41, s6, 1\ns_add_u32 s41, s41, s5\ns_and_b32 s41, s41, 15")
    else:
        a("s_mov_b32 s41, 0")
    pr.at(2)
    a("s_waitcnt lgkmcnt(0)")
    pr.stamp()
    def issue():
        a("s_lshl_b32 s43, s41, 12")
        a("s_lshl_b32 s44, s41, 17")
        a("s_add_u32 s46, s42, s39")
        for t in range(4):
            if t == 0:
                a(f"s_add_u32 m0, s42, s40")
                a("s_nop 0")
            if t == 0 or True:
                pass
            a(f"buffer_load_dwordx4 v1, s[8:11], s43 offen offset:{1024*t} lds")
        for t in range(4):
            a(f"s_add_u32 m0, s46, {WO + 4096*t}")
            a(f"s_add_u32 s45, s44, {16*2048*t}")
            a(f"buffer_load_dwordx4 v2, s[12:15], s45 offen lds")
        a(f"""
        s_add_u32 s41, s41, 1
        s_and_b32 s41, s41, 15
        s_add_u32 s42, s42, {STG}
        s_cmp_ge_u32 s42, {NST*STG}
        s_cselect_b32 s42, 0, s42
        """)
    G = 8
    issue(); pr.stamp()
    for _ in range(NST - 2): issue()
    pr.stamp()
    a(f"s_mov_b32 s47, {16-(NST-1)}")
    a.label("p3_ld")
    a(f"s_waitcnt vmcnt({G*(NST-2)})\ns_barrier")
    issue()
    a("s_sub_u32 s47, s47, 1\ns_cmp_lg_u32 s47, 0\ns_cbranch_scc1 p3_ld")
    for k in range(NST - 2, -1, -1):
        a(f"s_waitcnt vmcnt({G*k})\ns_barrier")
    pr.flush(8)
    a("s_endpgm")
    a.label("p3_exit")
    a("s_endpgm")
    return a.text(), descriptor(name, 128, 128), NST * STG

if __name__ == "__main__":
    t, d, lds = gen_p3({})
    print(len(t.split("\n")), "lines; lds", lds)
    check(t)
```

```python
from asmlib import *
from common import *

STG = 53248
XO, WO, KVO = 0, 16384, 49152
NAME = "p1_kernel"

def gen_p1(cfg):
    rot = cfg.get("p1_rot", 1)
    st_mod = cfg.get("p1_store", "")
    xm = cfg.get("p1_xmod", ""); wmod = cfg.get("p1_wmod", ""); tm = cfg.get("p1_tmod", "")
    a = Asm()
    pr = Prof(a, cfg.get("prof"), 0, 20)
    a(khead(NAME))
    pr.stamp(True); pr.stamp()
    a(f"""
    s_cmp_ge_u32 s2, 256
    s_cbranch_scc1 p1_exit
    v_lshrrev_b32 v1, 6, v0
    v_and_b32 v0, 63, v0
    s_and_b32 s7, s2, 7
    v_readfirstlane_b32 s3, v1
    s_lshr_b32 s4, s7, 1
    s_and_b32 s7, s7, 1
    s_lshl_b32 s7, s7, 3
    s_lshr_b32 s6, s2, 3
    s_and_b32 s5, s6, 7
    s_add_u32 s5, s5, s7
    s_lshr_b32 s6, s6, 3
    s_load_dwordx2 s[20:21], s[0:1], {KA_WS}
    s_cmp_eq_u32 s4, 3
    s_cbranch_scc1 p1_isB
    s_load_dwordx2 s[8:9], s[0:1], {KA_AX}
    s_load_dwordx2 s[12:13], s[0:1], {KA_AWQKV}
    s_load_dwordx2 s[16:17], s[0:1], {KA_AWQKV}
    s_mov_b32 s14, {hex(6*MB)}
    s_mov_b32 s18, 0
    s_branch p1_ptrs
p1_isB:
    s_load_dwordx2 s[8:9], s[0:1], {KA_BX}
    s_load_dwordx2 s[12:13], s[0:1], {KA_BWQ}
    s_mov_b32 s14, {hex(2*MB)}
    s_mov_b32 s18, 0x10000
    s_bitcmp1_b32 s6, 0
    s_cbranch_scc1 p1_isBV
    s_load_dwordx2 s[16:17], s[0:1], {KA_BWK}
    s_branch p1_ptrs
p1_isBV:
    s_load_dwordx2 s[16:17], s[0:1], {KA_BWV}
p1_ptrs:
    s_mov_b32 s10, {hex(4*MB)}
    s_mov_b32 s11, 0x20000
    s_mov_b32 s15, 0x20000
    s_mov_b32 s19, 0x20000
    s_mov_b32 s22, {hex(WS_SIZE)}
    s_mov_b32 s23, 0x20000
    s_cmp_ge_u32 s3, 4
    s_cbranch_scc1 p1_loader
    """)
    ACC = 0
    XF = 128
    WF = 144
    KF = 176
    KACC = 184
    XA = 200
    WA = 204
    KA = 208
    LN = 209
    T0 = 210
    xf = lambda st, mi: XF + 8 * st + 4 * mi
    wf = lambda st, tt: WF + 16 * st + 4 * tt
    kf = lambda st: KF + 4 * st
    acc = lambda mi, tt: ACC + 16 * (4 * mi + tt)
    cpf = cfg.get("p1_cpf", 0)
    TV, TD = 218, 219
    if cpf:
        a(f"""
        s_lshr_b32 s7, s2, 3               ; idx 0..31
        s_and_b32 s26, s2, 1
        s_lshl_b32 s26, s26, 10
        s_lshl_b32 s27, s7, 5
        s_add_u32 s26, s26, s27
        s_and_b32 s27, s3, 1
        s_lshl_b32 s28, s27, 4
        s_add_u32 s26, s26, s28
        s_lshl_b32 s26, s26, 11
        s_lshl_b32 s7, s7, 1
        s_add_u32 s7, s7, s27
        s_mov_b32 s28, 6144
        s_lshl_b32 s27, s4, 11
        s_cmp_eq_u32 s4, 3
        s_cselect_b32 s28, 2048, s28
        s_cselect_b32 s27, 0, s27
        s_mul_i32 s7, s7, s28
        s_add_u32 s7, s7, s27
        s_lshl_b32 s28, s28, 6
        v_lshrrev_b32 v{TV}, 2, v0
        v_lshlrev_b32 v{TV}, 11, v{TV}
        v_and_b32 v{TD}, 3, v0
        v_lshl_add_u32 v{TV}, v{TD}, 5, v{TV}
        v_add_u32 v{TV}, s26, v{TV}
        v_lshlrev_b32 v{TD}, 5, v0
        v_add_u32 v{TD}, s7, v{TD}
        s_mov_b32 s48, 128
        s_cmp_ge_u32 s3, 2
        s_cselect_b64 vcc, -1, 0
        s_cselect_b32 s48, s28, s48
        v_cndmask_b32 v{TV}, v{TV}, v{TD}, vcc
        s_waitcnt lgkmcnt(0)
        s_cselect_b32 s52, s12, s8
        s_cselect_b32 s53, s13, s9
        s_cselect_b32 s54, s14, s10
        s_mov_b32 s55, 0x20000
        """)
        first = cfg.get("p1_cpf0", 2)
        a(f"s_mul_i32 s7, s48, {first}")
        for sl in range(first, cpf):
            a(f"buffer_load_dword v{TD}, v{TV}, s[52:55], s7 offen{tm}")
            a("s_add_u32 s7, s7, s48")
        a(f"s_mov_b32 s49, s7\ns_mul_i32 s53, s48, 15" if False else f"s_mov_b32 s49, s7\ns_mul_i32 s56, s48, 15")
        a(f"""
        s_cmp_eq_u32 s4, 3
        s_cbranch_scc0 p1_nokvpf
        s_lshr_b32 s7, s2, 3
        s_lshr_b32 s26, s7, 4
        s_lshl_b32 s26, s26, 3
        s_and_b32 s7, s7, 7
        s_add_u32 s7, s7, s26
        s_lshl_b32 s7, s7, 12
        s_lshl_b32 s26, s3, 10
        s_add_u32 s7, s7, s26
        v_lshlrev_b32 v{TD+1}, 4, v0
        buffer_load_dword v{TD}, v{TD+1}, s[16:19], s7 offen
p1_nokvpf:
        """)
    a(f"""
    s_lshr_b32 s24, s3, 1
    s_and_b32 s25, s3, 1
    v_mov_b32 v{T0}, v0
    v_and_b32 v{T0+1}, 31, v{T0}            ; l&31
    v_lshrrev_b32 v{T0+2}, 5, v{T0}         ; hi
    v_lshrrev_b32 v{T0+3}, 1, v{T0}
    v_and_b32 v{T0+3}, 7, v{T0+3}           ; z
    v_xor_b32 v{T0+3}, v{T0+3}, v{T0+2}     ; hi^z
    v_lshlrev_b32 v{T0+3}, 4, v{T0+3}
    v_lshl_add_u32 v{T0+3}, v{T0+1}, 7, v{T0+3}   ; tok*128 + ..
    s_lshl_b32 s7, s24, 13                   ; wm*64*128
    v_add_u32 v{XA}, s7, v{T0+3}
    v_xor_b32 v{XA+1}, 32, v{XA}
    v_xor_b32 v{XA+2}, 64, v{XA}
    v_xor_b32 v{XA+3}, 0x60, v{XA}
    v_lshrrev_b32 v{T0+3}, 2, v{T0}
    v_and_b32 v{T0+3}, 3, v{T0+3}           ; r
    v_and_b32 v{T0+4}, 3, v{T0}             ; c4
    v_lshrrev_b32 v{T0+5}, 4, v{T0}
    v_and_b32 v{T0+5}, 1, v{T0+5}           ; g&1
    v_lshlrev_b32 v{T0+5}, 5, v{T0+5}
    v_lshl_add_u32 v{T0+5}, v{T0+4}, 3, v{T0+5}   ; (g&1)*32 + c4*8
    v_lshl_add_u32 v{T0+6}, v{T0+2}, 3, v{T0+3}   ; 8hi + r
    v_lshl_add_u32 v{KA}, v{T0+6}, 6, v{T0+5}
    v_add_u32 v{KA}, {KVO}, v{KA}
    v_lshl_add_u32 v{T0+5}, v{T0+6}, 9, v{T0+5}   ; (8hi+r)*512 + ...
    s_lshl_b32 s7, s25, 8
    s_add_u32 s7, s7, {WO}
    v_add_u32 v{T0+5}, s7, v{T0+5}
    """)
    for tt in range(4):
        a(f"v_xor_b32 v{T0+4}, {tt}, v{T0+3}")
        a(f"v_lshl_add_u32 v{WA+tt}, v{T0+4}, 6, v{T0+5}")
    a(f"v_lshlrev_b32 v{LN}, 4, v{T0}")
    for i in range(128): a(f"v_mov_b32 v{ACC+i}, 0")
    for i in range(16): a(f"v_mov_b32 v{KACC+i}, 0")
    a(f"s_mov_b32 s26, 0\ns_mov_b32 s50, {-2*STG}\ns_mov_b32 s51, {STG}")
    a(f"""
    s_cmp_eq_u32 s4, 2
    s_cbranch_scc1 p1_c_V
    s_cmp_eq_u32 s4, 3
    s_cbranch_scc0 p1_c_QK
    s_lshl_b32 s7, s6, 1
    s_add_u32 s7, s7, s25
    """)
    for v in range(8):
        a(f"s_cmp_eq_u32 s7, {v}")
        a(f"s_cbranch_scc1 p1_c_B{v}")
    a("s_endpgm")

    def reads(st, s, useKV):
        x = lambda mi: f"ds_read_b128 {vr(xf(st,mi),4)}, v{XA+s} offset:{4096*mi}"
        w = lambda tt, h: f"ds_read_b64_tr_b16 {vr(wf(st,tt)+2*h,2)}, v{WA+tt} offset:{8192*s+2048*h}"
        g = [[x(0), w(0,0), w(0,1)], [w(1,0), w(1,1)], [x(1), w(2,0)], [w(2,1), w(3,0), w(3,1)], []]
        if useKV:
            g[4] = [f"ds_read_b64_tr_b16 {vr(kf(st)+2*h,2)}, v{KA} offset:{1024*s+256*h}" for h in range(2)]
        return g

    def body(var, last):
        kv = var.get("kv")
        for s in range(4):
            st = s & 1
            mf = []
            for mi in range(2):
                for tt in range(4):
                    A_, B_ = (wf(st,tt), xf(st,mi))
                    if var["vtype"]: A_, B_ = B_, A_
                    mf.append(f"v_mfma_f32_32x32x16_bf16 {vr(acc(mi,tt),16)}, {vr(A_,4)}, {vr(B_,4)}, {vr(acc(mi,tt),16)}")
            if kv and (s >> 1) == kv[1]:
                A_, B_ = (kf(st), xf(st, kv[2]))
                if kv[0]: A_, B_ = B_, A_
                mf.insert(5, f"v_mfma_f32_32x32x16_bf16 {vr(KACC,16)}, {vr(A_,4)}, {vr(B_,4)}, {vr(KACC,16)}")
            gaps = [[] for _ in mf]
            ns = (s + 1) & 3
            nkv = kv and ((ns >> 1) == kv[1])
            a("s_waitcnt lgkmcnt(0)")
            if s == 3:
                if last:
                    pass
                else:
                    a("s_barrier")
                    g = reads(st ^ 1, 0, nkv)
                    add = lambda r: f"v_add_u32 v{r}, s27, v{r}"
                    gaps[0] = [add(XA), add(WA)] + g[0]
                    gaps[1] = [add(WA+1)] + g[1]
                    gaps[2] = [add(WA+2)] + g[2]
                    gaps[3] = [add(WA+3)] + g[3]
                    gaps[4] = ([add(KA)] + g[4]) if kv else []
                    if kv and not nkv: gaps[4] = [add(KA)]
                    gaps[5] = [add(XA+1), add(XA+2)]
                    gaps[6] = [add(XA+3), "s_sub_u32 s28, s28, 1", "s_cmp_lg_u32 s28, 0"]
            else:
                g = reads(st ^ 1, ns, nkv)
                for k in range(5): gaps[k] = list(g[k])
                if s == 0 and not last:
                    gaps[5] += ["s_add_u32 s26, s26, 1", "s_cmp_eq_u32 s26, 3"]
                    gaps[6] += ["s_cselect_b32 s27, s50, s51", "s_cselect_b32 s26, 0, s26"]
                if s == 1 and not last and cpf:
                    gaps[5] += ["s_min_u32 s7, s49, s56", "s_add_u32 s49, s49, s48"]
                    gaps[6] += [f"buffer_load_dword v{TD}, v{TV}, s[52:55], s7 offen{tm}"]
            for m, g in zip(mf, gaps):
                a(m)
                for x in g: a(x)

    def epilogue(var):
        kv = var.get("kv")
        a("s_nop 7")
        a("s_nop 3")
        if cpf: a("s_waitcnt vmcnt(0)")
        if kv and kv[1] == 1:
            a(f"s_lshl_b32 s7, s24, 12")
            a(f"s_add_u32 s7, s7, {STG}")
            a(f"v_add_u32 v{T0}, s7, v{LN}")
            for j in range(4):
                a(f"ds_write_b128 v{T0}, {vr(KACC+4*j,4)} offset:{1024*j}")
        for mi in range(2):
            for tt in range(4):
                r = acc(mi, tt)
                if var["scale"]:
                    for j in range(8): a(f"v_pk_mul_f32 {vr(r+2*j,2)}, {vr(r+2*j,2)}, s[34:35]")
                for j in range(8): a(f"v_cvt_pk_bf16_f32 v{r+j}, v{r+2*j}, v{r+2*j+1}")
                a(f"s_mul_i32 s7, s31, {tt}")
                a(f"s_add_u32 s7, s7, s30")
                if mi: a(f"s_add_u32 s7, s7, s32")
                a(f"buffer_store_dwordx4 {vr(r,4)}, v{LN}, s[20:23], s7 offen{st_mod}")
                a(f"buffer_store_dwordx4 {vr(r+4,4)}, v{LN}, s[20:23], s7 offen offset:1024{st_mod}")
        if kv:
            a("s_waitcnt lgkmcnt(0)")
            a("s_barrier")
            if kv[1] == 0:
                a(f"s_lshl_b32 s7, s24, 12")
                a(f"s_add_u32 s7, s7, {STG}")
                a(f"v_add_u32 v{T0}, s7, v{LN}")
                for j in range(4):
                    a(f"ds_read_b128 {vr(XF+4*j,4)}, v{T0} offset:{1024*j}")
                a("s_waitcnt lgkmcnt(0)")
                for j in range(16): a(f"v_add_f32 v{KACC+j}, v{KACC+j}, v{XF+j}")
                for j in range(8): a(f"v_cvt_pk_bf16_f32 v{KACC+j}, v{KACC+2*j}, v{KACC+2*j+1}")
                a(f"""
                s_lshl_b32 s7, s5, 2
                s_lshl_b32 s33, s24, 1
                s_add_u32 s7, s7, s33
                s_add_u32 s7, s7, {kv[2]}
                s_lshl_b32 s7, s7, 12
                s_add_u32 s7, s7, {WS_KVB + 2048*kv[0]}
                buffer_store_dwordx4 {vr(KACC,4)}, v{LN}, s[20:23], s7 offen{st_mod}
                buffer_store_dwordx4 {vr(KACC+4,4)}, v{LN}, s[20:23], s7 offen offset:1024{st_mod}
                """)
        pr.flush(T0)
        a("s_endpgm")

    def variant(lbl, var):
        a.label(lbl)
        a(f"""
        s_lshl_b32 s7, s6, 3
        s_lshl_b32 s33, s25, 2
        s_add_u32 s7, s7, s33          ; head0
        s_lshl_b32 s33, s5, 2
        s_lshl_b32 s36, s24, 1
        s_add_u32 s33, s33, s36        ; tb0
        """)
        if var["out"] in ("QA", "QB"):
            base = WS_QA if var["out"] == "QA" else WS_QB
            a(f"s_mov_b32 s31, 131072\ns_mov_b32 s32, 2048\ns_mov_b32 s36, {base}")
        else:
            a(f"s_mov_b32 s31, 262144\ns_mov_b32 s32, 4096\ns_mov_b32 s36, {WS_KVA + (2048 if var['out']=='VA' else 0)}")
        if var["out"] == "QKA":
            a(f"""
            s_cmp_eq_u32 s4, 0
            s_cselect_b32 s31, 131072, s31
            s_cselect_b32 s32, 2048, s32
            s_cselect_b32 s36, {WS_QA}, s36
            s_cselect_b32 s34, {hex(QSCALE)}, 1.0
            s_mov_b32 s35, s34
            """)
        else:
            a(f"s_mov_b32 s34, {hex(QSCALE)}\ns_mov_b32 s35, s34")
        a(f"""
        s_mul_i32 s7, s7, s31
        s_mul_i32 s33, s33, s32
        s_add_u32 s30, s7, s33
        s_add_u32 s30, s30, s36
        s_mov_b32 s28, 15
        s_waitcnt lgkmcnt(0)
        s_barrier
        """)
        pr.at(2); pr.stamp()
        kv = var.get("kv")
        for g in reads(0, 0, kv and kv[1] == 0):
            for x in g: a(x)
        lp = lbl + "_loop"
        a(".p2align 6")
        a.label(lp)
        body(var, False)
        a(f"s_cbranch_scc1 {lp}")
        body(var, True)
        pr.stamp()
        epilogue(var)

    variant("p1_c_QK", dict(vtype=False, scale=True, out="QKA"))
    variant("p1_c_V", dict(vtype=True, scale=False, out="VA"))
    for v in range(8):
        nt, wn = v >> 1, v & 1
        variant(f"p1_c_B{v}", dict(vtype=False, scale=True, out="QB", kv=(nt & 1, wn, nt >> 1)))

    a.label("p1_loader")
    a(f"""
    s_sub_u32 s24, s3, 4
    s_and_b32 s25, s24, 1               ; parity
    v_lshrrev_b32 v4, 4, v0
    s_lshl_b32 s7, s25, 2
    v_add_u32 v4, s7, v4
    v_and_b32 v4, 7, v4                 ; swz
    v_and_b32 v5, 7, v0
    v_xor_b32 v4, v4, v5                ; chunk
    v_lshlrev_b32 v4, 4, v4
    v_lshrrev_b32 v5, 3, v0             ; tok_l
    v_lshl_add_u32 v1, v5, 11, v4
    s_lshl_b32 s7, s5, 7
    s_lshl_b32 s26, s24, 3
    s_add_u32 s7, s7, s26
    s_lshl_b32 s7, s7, 11
    v_add_u32 v1, s7, v1
    v_lshrrev_b32 v5, 5, v0             ; row_l
    s_lshl_b32 s7, s25, 1
    v_add_u32 v4, s7, v5
    v_and_b32 v4, 3, v4
    v_lshlrev_b32 v4, 2, v4
    v_and_b32 v6, 31, v0
    v_xor_b32 v4, v4, v6
    v_lshlrev_b32 v4, 4, v4             ; chunk*16
    s_lshl_b32 s26, s24, 1
    v_add_u32 v5, s26, v5
    v_lshlrev_b32 v3, 4, v0
    s_lshl_b32 s7, s24, 10
    v_add_u32 v3, s7, v3
    s_lshl_b32 s40, s24, 10             ; lw*1024
    """)
    pf = cfg.get("p1_pf", 0)
    if rot and not pf:
        a("s_lshl_b32 s41, s5, 1\ns_mul_i32 s7, s6, 5\ns_add_u32 s41, s41, s7\ns_and_b32 s41, s41, 15")
    elif rot == 2:
        a("s_xor_b32 s41, s5, s6\ns_and_b32 s41, s41, 1\ns_lshl_b32 s41, s41, 3")
    else:
        a("s_mov_b32 s41, 0")
    a("s_cmp_eq_u32 s4, 3\ns_cbranch_scc1 p1_loadB")
    def loader(isB):
        RS = 2048 if isB else 6144
        G = 13 if isB else 12
        a(f"v_mul_u32_u24 v5, {RS}, v5" if RS != 2048 else "v_lshlrev_b32 v5, 11, v5")
        a("v_add_u32 v2, v4, v5")
        if isB:
            a("s_lshl_b32 s7, s6, 9")
        else:
            a("s_lshl_b32 s7, s4, 11\ns_lshl_b32 s26, s6, 9\ns_add_u32 s7, s7, s26")
        a("v_add_u32 v2, s7, v2")
        a("s_mov_b32 s42, s40")
        if pf:
            a(f"""
            s_lshr_b32 s7, s2, 3               ; idx 0..31
            s_and_b32 s26, s2, 1
            s_lshl_b32 s26, s26, 10
            s_lshl_b32 s27, s7, 5
            s_add_u32 s26, s26, s27
            s_and_b32 s27, s24, 1
            s_lshl_b32 s28, s27, 4
            s_add_u32 s26, s26, s28
            s_lshl_b32 s26, s26, 11
            s_lshl_b32 s7, s7, 1
            s_add_u32 s7, s7, s27
            s_mul_i32 s7, s7, {RS}
            """)
            if not isB: a("s_lshl_b32 s27, s4, 11\ns_add_u32 s7, s7, s27")
            a(f"""
            v_lshrrev_b32 v6, 2, v0
            v_lshlrev_b32 v6, 11, v6
            v_and_b32 v7, 3, v0
            v_lshl_add_u32 v6, v7, 5, v6
            v_add_u32 v6, s26, v6
            v_lshlrev_b32 v7, 5, v0
            v_add_u32 v7, s7, v7
            s_mov_b32 s48, 128
            s_cmp_ge_u32 s24, 2
            s_cselect_b64 vcc, -1, 0
            s_cselect_b32 s48, {64*RS}, s48
            v_cndmask_b32 v6, v6, v7, vcc
            """)
        pr.at(2)
        a("s_waitcnt lgkmcnt(0)")
        steps = cfg.get("prof_steps")
        class NP:
            def stamp(self): pass
        pr0 = NP() if steps else pr
        pr0.stamp()
        if pf:
            a("""
            s_cmp_ge_u32 s24, 2
            s_cselect_b32 s52, s12, s8
            s_cselect_b32 s53, s13, s9
            s_cselect_b32 s54, s14, s10
            s_mov_b32 s55, 0x20000
            """)
        def ops():
            hd = [f"s_lshl_b32 s43, s41, 7", f"s_mul_i32 s44, s41, {64*RS}"]
            if isB: hd.append("s_lshl_b32 s46, s41, 12")
            seq = []
            for t in range(4): seq.append(("x", t))
            for t in range(8): seq.append(("w", t))
            order = [seq[0], seq[4], seq[5], seq[1], seq[6], seq[7], seq[2], seq[8], seq[9], seq[3], seq[10], seq[11]]
            g = []
            for k, t in order:
                if k == "x":
                    g.append([f"s_add_u32 m0, s42, {XO + 4096*t}", f"s_add_u32 s45, s43, {65536*t}", f"buffer_load_dwordx4 v1, s[8:11], s45 offen{xm} lds"])
                else:
                    g.append([f"s_add_u32 m0, s42, {WO + 4096*t}", f"s_add_u32 s45, s44, {8*RS*t}", f"buffer_load_dwordx4 v2, s[12:15], s45 offen{wmod} lds"])
            if isB:
                g.append([f"s_add_u32 m0, s42, {KVO}", "s_nop 0", f"buffer_load_dwordx4 v3, s[16:19], s46 offen lds"])
            tl = ["s_add_u32 s41, s41, 1", "s_and_b32 s41, s41, 15", f"s_add_u32 s42, s42, {STG}", f"s_cmp_ge_u32 s42, {3*STG}", "s_cselect_b32 s42, s40, s42"]
            g[0] = hd + g[0]; g[-1] = g[-1] + tl
            return g
        def issue(lo=0, hi=None):
            for grp in ops()[lo:hi]:
                for x in grp: a(x)
        def touch(reg, sl=None):
            if sl is None:
                a("s_min_u32 s7, s49, 15\ns_mul_i32 s7, s7, s48\ns_add_u32 s49, s49, 1")
            else:
                a(f"s_mul_i32 s7, s48, {sl}")
            a(f"buffer_load_dword v{reg}, v6, s[52:55], s7 offen{tm}")
        lp = a.newlabel("p1_ld")
        if not pf:
            n0 = cfg.get("p1_n0", G)
            n0 = min(n0, G)
            issue(); pr0.stamp(); issue(0, n0); pr0.stamp()
            a(f"s_waitcnt vmcnt({n0})\ns_barrier")
            if steps: pr.stamp()
            if n0 < G: issue(n0, None)
            issue()
            if steps:
                for j in range(13):
                    a(f"s_waitcnt vmcnt({G})\ns_barrier")
                    pr.stamp()
                    issue()
            else:
                a("s_mov_b32 s47, 13")
                a.label(lp)
                a(f"s_waitcnt vmcnt({G})\ns_barrier")
                issue()
                a(f"s_sub_u32 s47, s47, 1\ns_cmp_lg_u32 s47, 0\ns_cbranch_scc1 {lp}")
            a(f"s_waitcnt vmcnt({G})\ns_barrier\ns_waitcnt vmcnt(0)\ns_barrier")
        else:
            n0 = min(cfg.get("p1_n0", 4), G)
            D = cfg.get("p1_pfd", 5)
            issue()
            ni = D - 3
            for k in range(ni): touch(10 + k, 2 + k)
            if isB and cfg.get("p1_pfkv", 1):
                a("""
                s_lshr_b32 s7, s2, 3
                s_lshr_b32 s26, s7, 4
                s_lshl_b32 s26, s26, 3
                s_and_b32 s7, s7, 7
                s_add_u32 s7, s7, s26
                s_lshl_b32 s7, s7, 12
                buffer_load_dword v9, v3, s[16:19], s7 offen
                """)
                ni += 1
            pr0.stamp()
            issue(0, n0); pr0.stamp()
            a(f"s_waitcnt vmcnt({n0 + ni})\ns_barrier")
            if steps: pr.stamp()
            if n0 < G: issue(n0, None)
            touch(20, D - 1)
            issue()
            a(f"s_mov_b32 s49, {D}")
            touch(21)
            if steps:
                for j in range(13):
                    a(f"s_waitcnt vmcnt({G+2})\ns_barrier")
                    pr.stamp()
                    issue()
                    touch(22)
            else:
                a("s_mov_b32 s47, 13")
                a.label(lp)
                a(f"s_waitcnt vmcnt({G+2})\ns_barrier")
                issue()
                touch(22)
                a(f"s_sub_u32 s47, s47, 1\ns_cmp_lg_u32 s47, 0\ns_cbranch_scc1 {lp}")
            a(f"s_waitcnt vmcnt({G+2})\ns_barrier\ns_waitcnt vmcnt(0)\ns_barrier")
        if steps: pr.n = 14
        pr.flush(8)
        a("s_endpgm")
    loader(False)
    a.label("p1_loadB")
    loader(True)
    a.label("p1_exit")
    a("s_endpgm")
    return a.text(), descriptor(NAME, 256, 256), 3 * STG

if __name__ == "__main__":
    t, d, lds = gen_p1({})
    print(len(t.split("\n")), "lines; lds", lds)
    check(t)
```
